```python
import torch

def _softmax(x, axis=-1):
    return torch.softmax(x, dim=axis)

def _gelu(x):
    return torch.nn.functional.gelu(x, approximate='tanh')

def _silu(x):
    return torch.nn.functional.silu(x)

def _sigmoid(x):
    return torch.sigmoid(x)

def _layernorm(x, axis=-1, eps=1e-05):
    m = x.mean(dim=axis, keepdim=True)
    v = x.var(dim=axis, keepdim=True, unbiased=False)
    return (x - m) / torch.sqrt(v + eps)

def _scatter_add(tgt, idx, src, axis=0):
    return tgt.clone().index_add_(axis, idx, src)

def _segment_sum(src, seg, n):
    out = torch.zeros((n,) + src.shape[1:], dtype=src.dtype)
    return out.index_add_(0, seg, src)

def _pad(x, pw):
    flat = tuple((v for pair in reversed(pw) for v in pair))
    return torch.nn.functional.pad(x, flat)
kernel_name = 'standalone__ragged_sequences_varlen_flash_attn__ragged'

def setup_inputs():

    _w = lambda a: (lambda t: t.to(torch.bfloat16) if t.is_floating_point() else t)(torch.as_tensor(a))
    cu = torch.tensor([0, 267, 391, 734, 1145, 1486, 1586, 1793, 1920, 2261, 2733, 2860, 2978, 3276, 3550, 4058, 4249], dtype=torch.int64)
    T = int(cu[-1])
    Hq, Hkv, D = (16, 4, 128)
    assert Hq % Hkv == 0
    return {'q': _w((lambda *s: torch.randn(*s, dtype=torch.bfloat16) * 0.8)(T, Hq, D)), 'k': _w((lambda *s: torch.randn(*s, dtype=torch.bfloat16) * 0.8)(T, Hkv, D)), 'v': _w((lambda *s: torch.randn(*s, dtype=torch.bfloat16) * 0.05)(T, Hkv, D)), 'cu': _w(cu)}

def reference(q, k, v, cu):
    T, Hq, D = q.shape
    Hkv = k.shape[1]
    rep = Hq // Hkv
    scale = D ** (-0.5)
    outs = []
    for i in range(len(cu) - 1):
        s, e = (int(cu[i]), int(cu[i + 1]))
        L = e - s
        qi = q[s:e].clone()
        ki = (lambda x, n, axis: torch.repeat_interleave(x, n, dim=axis))(k[s:e], rep, axis=1)
        vi = (lambda x, n, axis: torch.repeat_interleave(x, n, dim=axis))(v[s:e], rep, axis=1)
        logits = torch.einsum('qhd,khd->hqk', qi, ki) * scale
        ar = torch.arange(L)
        neg = (lambda x, dt: x.to(dt))(ar[None, :] > ar[:, None], logits.dtype) * -1000000000.0
        p = _softmax(logits + neg[None, :, :], axis=-1)
        outs.append(torch.einsum('hqk,khd->qhd', p, vi))
    return torch.concatenate(outs, axis=0)
```

```python
import re

REG_RE = re.compile(r'^(-|abs\()?([vsa])(\d+)\)?$')
RNG_RE = re.compile(r'^(-)?([vsa])\[(\d+):(\d+)\]$')

TRANS = ('v_exp_f32', 'v_log_f32', 'v_rcp_f32', 'v_rsq_f32', 'v_sqrt_f32', 'v_sin_f32', 'v_cos_f32')


def regs_of(tok):
    tok = tok.strip()
    m = RNG_RE.match(tok)
    if m:
        return [(m.group(2), i) for i in range(int(m.group(3)), int(m.group(4)) + 1)]
    m = REG_RE.match(tok)
    if m:
        return [(m.group(2), int(m.group(3)))]
    if tok == 'vcc':
        return [('s', 'vcc')]
    if tok == 'exec':
        return [('s', 'exec')]
    if tok == 'm0':
        return [('s', 'm0')]
    return []


class Ins:
    __slots__ = ('text', 'op', 'ops', 'kind', 'wr', 'rd', 'mods', 'srcC', 'srcAB', 'passes')

    def __repr__(self):
        return self.text


def parse(line):
    s = line.split(';')[0].split('//')[0].strip()
    if not s or s.endswith(':') or s.startswith('.'):
        return None
    parts = s.split(None, 1)
    op = parts[0]
    rest = parts[1] if len(parts) > 1 else ''
    toks = [t.strip() for t in rest.split(',')] if rest else []
    mods = []
    if toks:
        last = toks[-1].split()
        if last:
            toks[-1] = last[0]
            mods = last[1:]
    i = Ins()
    i.text = s
    i.op = op
    i.ops = toks
    i.mods = mods
    i.wr = []
    i.rd = []
    i.srcC = []
    i.srcAB = []
    i.passes = 0
    base = op.replace('_e32', '').replace('_e64', '')
    R = regs_of
    if op.startswith('v_mfma'):
        i.kind = 'mfma'
        i.wr = R(toks[0])
        i.srcAB = R(toks[1]) + R(toks[2])
        i.srcC = R(toks[3])
        i.rd = i.srcAB + i.srcC
        if '32x32x16' in op:
            i.passes = 8
        elif '16x16x32' in op:
            i.passes = 4
        elif '4x4x4' in op:
            i.passes = 2
        else:
            raise ValueError(op)
    elif op.startswith('v_'):
        i.kind = 'valu'
        if base.startswith('v_cmp'):
            i.wr = R(toks[0])
            for t in toks[1:]:
                i.rd += R(t)
        elif base.startswith('v_permlane32_swap') or base.startswith('v_permlane16_swap'):
            i.wr = R(toks[0]) + R(toks[1])
            i.rd = R(toks[0]) + R(toks[1])
        elif base in ('v_fmac_f32', 'v_dot2c_f32_bf16', 'v_pk_fmac_f16'):
            i.wr = R(toks[0])
            for t in toks:
                i.rd += R(t)
        elif base in ('v_add_co_u32', 'v_addc_co_u32', 'v_sub_co_u32'):
            i.wr = R(toks[0]) + R(toks[1])
            for t in toks[2:]:
                i.rd += R(t)
        else:
            i.wr = R(toks[0])
            for t in toks[1:]:
                i.rd += R(t)
            if base == 'v_cndmask_b32' and len(toks) == 3:
                i.rd += [('s', 'vcc')]
    elif op.startswith('ds_'):
        i.kind = 'ds'
        if op.startswith('ds_read'):
            i.wr = R(toks[0])
            i.rd = R(toks[1])
        elif op.startswith('ds_write'):
            for t in toks:
                i.rd += R(t)
        else:
            raise ValueError(op)
    elif op.startswith('buffer_') or op.startswith('global_'):
        i.kind = 'vmem'
        allmods = ' '.join(mods)
        if op.startswith('buffer_load') and re.search(r'\blds\b', allmods):
            for t in toks:
                i.rd += R(t)
            i.rd += [('s', 'm0')]
            i.kind = 'vmem_lds'
        elif op.startswith('buffer_load'):
            i.wr = R(toks[0])
            for t in toks[1:]:
                i.rd += R(t)
        elif op.startswith('buffer_store') or op.startswith('buffer_atomic'):
            for t in toks:
                i.rd += R(t)
            i.kind = 'vmem_st'
        elif op.startswith('global_store'):
            for t in toks:
                i.rd += R(t)
            i.kind = 'vmem_st'
        elif op.startswith('global_load'):
            i.wr = R(toks[0])
            for t in toks[1:]:
                i.rd += R(t)
        elif op.startswith('buffer_wbl2') or op.startswith('buffer_inv'):
            pass
        else:
            raise ValueError(op)
    elif op.startswith('s_'):
        i.kind = 'salu'
        if op in ('s_waitcnt', 's_barrier', 's_nop', 's_endpgm', 's_branch', 's_setprio', 's_sleep') or op.startswith('s_cbranch'):
            i.kind = 'ctl'
            if op in ('s_cbranch_vccz', 's_cbranch_vccnz'):
                i.rd = [('s', 'vcc')]
        elif op.startswith('s_cmp') or op.startswith('s_bitcmp'):
            for t in toks:
                i.rd += R(t)
        elif op.startswith('s_load') or op in ('s_memtime', 's_memrealtime'):
            i.kind = 'smem'
            i.wr = R(toks[0])
            for t in toks[1:]:
                i.rd += R(t)
        elif 'saveexec' in op:
            i.wr = R(toks[0]) + [('s', 'exec')]
            i.rd = R(toks[1]) + [('s', 'exec')]
        else:
            i.wr = R(toks[0])
            for t in toks[1:]:
                i.rd += R(t)
            if op in ('s_addk_i32', 's_mulk_i32'):
                i.rd += R(toks[0])
    else:
        raise ValueError('unknown op ' + op)
    return i


def states(i):
    if i.op == 's_nop':
        return int(i.ops[0], 0) + 1
    return 1


def is_trans(i):
    b = i.op.replace('_e32', '').replace('_e64', '')
    return b in TRANS


XDL_D_TO_VALU = {2: 5, 4: 8, 8: 12}
XDL_D_TO_AB = {2: 5, 4: 8, 8: 12}
XDL_D_TO_C_OVERLAP = {2: 4, 4: 6, 8: 10}
XDL_D_TO_C_SAME = {2: 2, 4: 0, 8: 0}
XDL_C_WAR = {2: 1, 4: 3, 8: 7}


def vset(rs):
    return set(r for r in rs if r[0] in 'va')


def sset(rs):
    return set(r for r in rs if r[0] == 's')


def need_states(prev, cur):
    need = 0
    pw_v = vset(prev.wr)
    cr_v = vset(cur.rd)
    cw_v = vset(cur.wr)
    if prev.kind == 'valu':
        if cur.kind == 'mfma' and pw_v & cr_v:
            need = max(need, 2)
        if cur.kind == 'valu':
            b = cur.op
            if b.startswith('v_permlane') and pw_v & cr_v:
                need = max(need, 2)
            if (b.startswith('v_readfirstlane') or b.startswith('v_readlane')) and pw_v & cr_v:
                need = max(need, 1)
            if 'dpp' in cur.text or 'row_' in cur.text or 'quad_perm' in cur.text:
                if pw_v & cr_v:
                    need = max(need, 2)
            if is_trans(prev) and not is_trans(cur) and pw_v & cr_v:
                need = max(need, 1)
            if sset(prev.wr) & sset(cur.rd):
                need = max(need, 2)
        if is_trans(prev) and cur.kind == 'mfma' and pw_v & cr_v:
            need = max(need, 2)
        if cur.kind in ('vmem', 'vmem_lds', 'vmem_st') and sset(prev.wr) & sset(cur.rd):
            need = max(need, 5)
        if cur.kind in ('salu', 'smem') and sset(prev.wr) & sset(cur.rd):
            need = max(need, 4)
    if prev.kind == 'mfma':
        p = prev.passes
        if cur.kind == 'mfma':
            if pw_v & vset(cur.srcAB):
                need = max(need, XDL_D_TO_AB[p])
            cC = vset(cur.srcC)
            if pw_v & cC:
                if pw_v == cC and cur.passes == p:
                    need = max(need, XDL_D_TO_C_SAME[p])
                else:
                    need = max(need, XDL_D_TO_C_OVERLAP[p])
            elif pw_v & cw_v:
                need = max(need, XDL_D_TO_C_OVERLAP[p])
        elif cur.kind in ('valu', 'ds', 'vmem', 'vmem_lds', 'vmem_st'):
            if pw_v & (cr_v | cw_v):
                need = max(need, XDL_D_TO_VALU[p])
            if cur.kind == 'valu' and vset(prev.srcC) & cw_v:
                need = max(need, XDL_C_WAR[p])
    if prev.kind == 'salu':
        if ('s', 'm0') in prev.wr and cur.kind == 'vmem_lds':
            need = max(need, 1)
    if prev.kind == 'vmem_st' and ('dwordx4' in prev.op or 'dwordx3' in prev.op):
        data = vset(regs_of(prev.ops[0])) if prev.op.startswith('buffer') else vset(regs_of(prev.ops[1]))
        if data & cw_v:
            need = max(need, 2)
    return need


MAXDIST = 20


def fix_hazards(lines):
    out = []
    hist = []
    n_ins = 0
    for ln in lines:
        i = parse(ln)
        if i is None:
            out.append(ln)
            continue
        need = 0
        dist = 0
        for p in reversed(hist):
            r = need_states(p, i)
            if r > dist:
                need = max(need, r - dist)
            dist += states(p)
            if dist >= MAXDIST:
                break
        while need > 0:
            k = min(need, 16)
            nop = '    s_nop %d' % (k - 1)
            out.append(nop)
            hist.append(parse(nop))
            need -= k
            n_ins += 1
        out.append(ln)
        hist.append(i)
        if len(hist) > 64:
            hist = hist[-40:]
    return out, n_ins


def check_path(lines, name=''):
    hist = []
    bad = 0
    for ln in lines:
        i = parse(ln)
        if i is None:
            continue
        dist = 0
        for p in reversed(hist):
            r = need_states(p, i)
            if r > dist:
                print('HAZARD[%s]: %s -> %s needs %d has %d' % (name, p.text, i.text, r, dist))
                bad += 1
            dist += states(p)
            if dist >= MAXDIST:
                break
        hist.append(i)
    return bad


WAIT_RE = re.compile(r'lgkmcnt\((\d+)\)')


def auto_lgkm(lines):
    out = []
    pend = []
    smem = set()
    for ln in lines:
        i = parse(ln)
        s = ln.split(';')[0].strip()
        if i is None:
            if s.endswith(':') and pend and '@carry' not in ln:
                live = [p for p in pend if p]
                assert not live, 'pending ds reads at label %s: %s' % (s, pend)
            out.append(ln)
            continue
        if i.op == 's_waitcnt':
            m = WAIT_RE.search(i.text)
            if m:
                k = int(m.group(1))
                if k == 0:
                    smem = set()
                while len(pend) > k:
                    pend.pop(0)
            out.append(ln)
            continue
        if i.kind == 'smem':
            assert not (smem & set(i.rd)), 'smem result used before wait: ' + ln
            smem |= set(i.wr)
            smem.add(('x', 'pending'))
            out.append(ln)
            continue
        touched = set(i.rd) | set(i.wr)
        assert not (smem & touched), 'smem result used before wait: ' + ln
        idx = -1
        for k, p in enumerate(pend):
            if p & touched:
                idx = k
        if idx >= 0:
            remain = len(pend) - 1 - idx
            if smem:
                remain = 0
                smem = set()
                idx = len(pend) - 1
            assert remain <= 15
            out.append('    s_waitcnt lgkmcnt(%d)' % remain)
            pend = pend[idx + 1:]
        if i.kind == 'ds':
            pend.append(set(i.wr))
        if i.kind == 'ctl' and (i.op.startswith('s_cbranch') or i.op == 's_branch') and '@carry' not in ln:
            live = [p for p in pend if p]
            assert not live, 'pending ds reads at branch %s: %s' % (ln, pend)
        out.append(ln)
    return out
```

```python
import math
import struct
import sys
from asmlib import fix_hazards, auto_lgkm, check_path

NAME = 'standalone__ragged_sequences_varlen_flash_attn__ragged'
CU = [0, 267, 391, 734, 1145, 1486, 1586, 1793, 1920, 2261, 2733, 2860, 2978, 3276, 3550, 4058, 4249]
GROUPS = [[0, 1, 2, 4, 5, 7, 8, 9], [3, 6, 10, 11, 12, 13, 14, 15]]

OPT = dict(stamp=False, store_mod='', prio=False)
for a in sys.argv[2:]:
    k, v = a.split('=')
    OPT[k] = eval(v)

SLOT = 16640
RW = 4160
VOFF = 2080
QBASE = 2 * SLOT
QW = 8448
OROW = 272
OW = 32 * OROW
LDS_BYTES = QBASE + 4 * QW


def fbits(x):
    return struct.unpack('<I', struct.pack('<f', x))[0]


C_SCALE = (128 ** -0.5) * math.log2(math.e)
T_DEFER = 8.0


def build_table():
    per_xcd = []
    for x in range(8):
        kvh = x & 3
        items = []
        for s in GROUPS[x >> 2]:
            L = CU[s + 1] - CU[s]
            n = (L + 31) // 32
            for j in range(n):
                items.append((j + 1, L, s, kvh, j))
        items.sort(key=lambda it: (-it[0], -it[1], it[2]))
        assert len(items) == 69
        first = items[:32]
        rest = items[32:]
        late = rest[-5:]
        mid = rest[:-5]
        second = list(reversed(mid))
        per_xcd.append(first + second + late)
    table = []
    for w in range(552):
        n, L, s, kvh, j = per_xcd[w & 7][w >> 3]
        start = CU[s]
        tok0 = start + 32 * j
        nvalid = min(32, L - 32 * j)
        d0 = tok0 * 4096 + kvh * 1024
        d1 = start * 1024 + kvh * 256
        d2 = (nvalid - 1) * 4096 + 1024
        d3 = ((L - 1) * 1024 + 256) | (n << 24)
        table.append((d0, d1, d2, d3))
    return table


vTID = 0
vQ = 2
vO = 34
vS = 98
vX = 114
vP = 130
vK = 138
vV = 170
vOffK = 202
vOffV = 203
vAK = 204
vAV = 205
vAKc = 206
vAVc = 207
vMC = 208
vTHR = 209
vL = 210
vL2 = 211
vMX = 212
vMX2 = 213
vT0 = 214
vT1 = 215
vT2 = 216
vT3 = 217
vM = 218
vE = 220
vNEG = 224
vLane = 225
vQQ = 226
vOffQ = 227
vAQ = 228
vOffO = 229
vAOW = 230
vAOR = 231
NVGPR = 232

sW = 30
sN = 31
sT = 36
sOffA = 37
sOffBK = 38
sOffBV = 39
sM0 = 40
sC = 41
sTmp = 42
sTmp2 = 43
sTdc = 44
sU = 45
sWR = 46
sMask = 48


def vr(b, n=1):
    return 'v%d' % b if n == 1 else 'v[%d:%d]' % (b, b + n - 1)


def sr(b, n=1):
    return 's%d' % b if n == 1 else 's[%d:%d]' % (b, b + n - 1)


class G:
    def __init__(self):
        self.l = []

    def I(self, s):
        self.l.append('    ' + s)

    def L(self, s, carry=False):
        self.l.append(s + ':' + (' ; @carry' if carry else ''))

    def C(self, s):
        self.l.append('    ; ' + s)

    def ext(self, lst):
        for s in lst:
            self.I(s)


stamp_idx = [0]


def stamp(g, k):
    if OPT['stamp']:
        g.I('s_memtime s[%d:%d]' % (80 + 2 * k, 81 + 2 * k))


def dma_tile(slot_salu=True):
    o = []
    o.append('s_sub_u32 %s, %s, %s' % (sr(sTmp), sr(sN), sr(sU)))
    o.append('s_sub_u32 %s, %s, 1' % (sr(sTmp), sr(sTmp)))
    o.append('s_lshl_b32 %s, %s, 15' % (sr(sOffA), sr(sTmp)))
    o.append('s_and_b32 %s, %s, 3' % (sr(sTmp2), sr(sU)))
    o.append('s_mul_i32 %s, %s, %d' % (sr(sTmp2), sr(sTmp2), SLOT))
    o.append('s_add_u32 %s, %s, %s' % (sr(sM0), sr(sTmp2), sr(sWR)))
    o.append('s_mov_b32 m0, %s' % sr(sM0))
    o.append('s_add_u32 %s, %s, %d' % (sr(sOffBK), sr(sOffA), 16384 - 1056))
    o.append('buffer_load_dwordx4 %s, s[16:19], %s offen lds' % (vr(vOffK), sr(sOffA)))
    o.append('buffer_load_dwordx4 %s, s[16:19], %s offen offset:1056 lds' % (vr(vOffK), sr(sOffBK)))
    o.append('s_add_u32 m0, %s, %d' % (sr(sM0), VOFF))
    o.append('s_add_u32 %s, %s, %d' % (sr(sOffBV), sr(sOffA), 16384 - 1024))
    o.append('buffer_load_dwordx4 %s, s[20:23], %s offen lds' % (vr(vOffV), sr(sOffA)))
    o.append('buffer_load_dwordx4 %s, s[20:23], %s offen offset:1024 lds' % (vr(vOffV), sr(sOffBV)))
    return o


def k_reads():
    return ['ds_read_b128 %s, %s offset:%d' % (vr(vK + 4 * ks, 4), vr(vAKc), 32 * ks) for ks in range(8)]


def v_reads(s):
    o = []
    for db in range(4):
        f = vV + 16 * s + 4 * db
        for jj in range(2):
            o.append('ds_read_b64_tr_b16 %s, %s offset:%d' % (vr(f + 2 * jj, 2), vr(vAVc), (4 * s + 2 * jj) * 256 + 64 * db))
    return o


def qk_mfma(first_c):
    o = []
    for ks in range(8):
        c = first_c if ks == 0 else vr(vS, 16)
        o.append('v_mfma_f32_32x32x16_bf16 %s, %s, %s, %s' % (vr(vS, 16), vr(vK + 4 * ks, 4), vr(vQ + 4 * ks, 4), c))
    return o


def pv_mfma(s):
    o = []
    for db in range(4):
        o.append('v_mfma_f32_32x32x16_bf16 %s, %s, %s, %s' % (vr(vO + 16 * db, 16), vr(vV + 16 * s + 4 * db, 4), vr(vP + 4 * s, 4), vr(vO + 16 * db, 16)))
    return o


def softmax_half(s):
    o = []
    for pr in range(4):
        r = 8 * s + 2 * pr
        e0 = vE + 2 * (pr & 1)
        o.append('v_exp_f32 %s, %s' % (vr(e0), vr(vX + r)))
        o.append('v_exp_f32 %s, %s' % (vr(e0 + 1), vr(vX + r + 1)))
        o.append('v_add_f32 %s, %s, %s' % (vr(vL), vr(vL), vr(e0)))
        o.append('v_add_f32 %s, %s, %s' % (vr(vL2), vr(vL2), vr(e0 + 1)))
        o.append('v_cvt_pk_bf16_f32 %s, %s, %s' % (vr(vP + 4 * s + pr), vr(e0), vr(e0 + 1)))
    return o


def max_tree():
    o = []
    o.append('v_max3_f32 %s, %s, %s, %s' % (vr(vMX), vr(vS), vr(vS + 1), vr(vS + 2)))
    o.append('v_max3_f32 %s, %s, %s, %s' % (vr(vMX2), vr(vS + 3), vr(vS + 4), vr(vS + 5)))
    o.append('v_max3_f32 %s, %s, %s, %s' % (vr(vMX), vr(vMX), vr(vS + 6), vr(vS + 7)))
    o.append('v_max3_f32 %s, %s, %s, %s' % (vr(vMX2), vr(vMX2), vr(vS + 8), vr(vS + 9)))
    o.append('v_max3_f32 %s, %s, %s, %s' % (vr(vMX), vr(vMX), vr(vS + 10), vr(vS + 11)))
    o.append('v_max3_f32 %s, %s, %s, %s' % (vr(vMX2), vr(vMX2), vr(vS + 12), vr(vS + 13)))
    o.append('v_max3_f32 %s, %s, %s, %s' % (vr(vMX), vr(vMX), vr(vS + 14), vr(vS + 15)))
    o.append('v_max_f32 %s, %s, %s' % (vr(vMX), vr(vMX), vr(vMX2)))
    return o


def x_fma():
    return ['v_fma_f32 %s, %s, %s, -%s' % (vr(vX + r), vr(vS + r), sr(sC), vr(vMC)) for r in range(16)]


def cross_max():
    return ['v_mov_b32 %s, %s' % (vr(vT0), vr(vMX)),
            'v_permlane32_swap_b32 %s, %s' % (vr(vMX), vr(vT0)),
            'v_max_f32 %s, %s, %s' % (vr(vMX), vr(vMX), vr(vT0))]


def gen():
    g = G()
    g.I('s_cmp_ge_u32 s2, 552')
    g.I('s_cbranch_scc1 L_end')
    stamp(g, 0)
    if OPT.get('probe'): g.l.append('    ;@RT0')
    g.I('s_load_dwordx4 s[4:7], s[0:1], 0')
    g.I('s_load_dwordx2 s[8:9], s[0:1], 16')
    g.I('s_load_dwordx2 s[10:11], s[0:1], 32')
    if OPT['stamp']:
        g.I('s_load_dwordx2 s[96:97], s[0:1], 48')
    g.I('s_getpc_b64 s[28:29]')
    g.L('L_pc')
    g.I('s_add_u32 s28, s28, L_table-L_pc')
    g.I('s_addc_u32 s29, s29, 0')
    g.I('s_lshl_b32 s3, s2, 4')
    g.I('s_load_dwordx4 s[32:35], s[28:29], s3')
    g.I('v_and_b32 %s, 63, v0' % vr(vLane))
    g.I('v_lshrrev_b32 %s, 6, v0' % vr(vT0))
    g.I('v_readfirstlane_b32 %s, %s' % (sr(sW), vr(vT0)))
    g.I('v_lshrrev_b32 %s, 4, %s' % (vr(vT1), vr(vLane)))
    g.I('v_and_b32 %s, 15, %s' % (vr(vT2), vr(vLane)))
    g.I('v_and_b32 %s, 1, %s' % (vr(vT3), vr(vT1)))
    g.I('v_xor_b32 %s, %s, %s' % (vr(vT3), vr(vT3), vr(vT2)))
    g.I('v_lshlrev_b32 %s, 12, %s' % (vr(vOffV), vr(vT1)))
    g.I('s_lshl_b32 %s, %s, 10' % (sr(sTmp), sr(sW)))
    g.I('v_add_u32 %s, %s, %s' % (vr(vOffV), sr(sTmp), vr(vOffV)))
    g.I('v_lshl_add_u32 %s, %s, 4, %s' % (vr(vOffK), vr(vT3), vr(vOffV)))
    g.I('v_lshl_add_u32 %s, %s, 4, %s' % (vr(vOffV), vr(vT2), vr(vOffV)))
    g.I('s_lshl_b32 %s, %s, 8' % (sr(sTmp), sr(sW)))
    g.I('v_lshlrev_b32 %s, 14, %s' % (vr(vOffQ), vr(vT1)))
    g.I('v_add_u32 %s, %s, %s' % (vr(vOffQ), sr(sTmp), vr(vOffQ)))
    g.I('v_lshl_add_u32 %s, %s, 4, %s' % (vr(vOffQ), vr(vT3), vr(vOffQ)))
    g.I('v_lshlrev_b32 %s, 12, %s' % (vr(vOffO), vr(vT1)))
    g.I('v_add_u32 %s, %s, %s' % (vr(vOffO), sr(sTmp), vr(vOffO)))
    g.I('v_lshl_add_u32 %s, %s, 4, %s' % (vr(vOffO), vr(vT2), vr(vOffO)))
    g.I('s_mul_i32 %s, %s, %d' % (sr(sWR), sr(sW), RW))
    g.I('s_mov_b32 %s, 0x%08x' % (sr(sC), fbits(C_SCALE)))
    g.I('s_mov_b32 %s, 0x%08x' % (sr(sTdc), fbits(T_DEFER / C_SCALE)))
    g.I('s_waitcnt lgkmcnt(0)')
    stamp(g, 1)
    g.I('s_add_u32 s12, s4, s32')
    g.I('s_addc_u32 s13, s5, 0')
    g.I('s_mov_b32 s14, s34')
    g.I('s_mov_b32 s15, 0x20000')
    g.I('s_add_u32 s16, s6, s33')
    g.I('s_addc_u32 s17, s7, 0')
    g.I('s_and_b32 s18, s35, 0xffffff')
    g.I('s_mov_b32 s19, 0x20000')
    g.I('s_add_u32 s20, s8, s33')
    g.I('s_addc_u32 s21, s9, 0')
    g.I('s_mov_b32 s22, s18')
    g.I('s_mov_b32 s23, 0x20000')
    g.I('s_add_u32 s24, s10, s32')
    g.I('s_addc_u32 s25, s11, 0')
    g.I('s_mov_b32 s26, s34')
    g.I('s_mov_b32 s27, 0x20000')
    g.I('s_lshr_b32 %s, s35, 24' % sr(sN))
    g.I('s_sub_u32 %s, %s, 1' % (sr(sTmp), sr(sN)))
    g.I('s_lshl_b32 %s, %s, 15' % (sr(sOffA), sr(sTmp)))
    g.I('s_mov_b32 m0, %s' % sr(sWR))
    g.I('s_add_u32 %s, %s, %d' % (sr(sOffBK), sr(sOffA), 16384 - 1056))
    g.I('buffer_load_dwordx4 %s, s[16:19], %s offen lds' % (vr(vOffK), sr(sOffA)))
    g.I('buffer_load_dwordx4 %s, s[16:19], %s offen offset:1056 lds' % (vr(vOffK), sr(sOffBK)))
    g.I('s_mul_i32 %s, %s, %d' % (sr(sTmp), sr(sW), QW))
    g.I('s_add_u32 %s, %s, %d' % (sr(sTmp), sr(sTmp), QBASE))
    for half in range(2):
        if half == 0:
            g.I('s_mov_b32 m0, %s' % sr(sTmp))
        else:
            g.I('s_add_u32 m0, %s, %d' % (sr(sTmp), 4224))
        for bb in range(2):
            b = 2 * half + bb
            for a in range(2):
                imm = bb * 2112 + a * 1056
                soff = (16 * a + b) * 4096 - imm
                g.I('s_mov_b32 %s, %d' % (sr(sTmp2), soff))
                g.I('buffer_load_dwordx4 %s, s[12:15], %s offen%s lds' % (vr(vOffQ), sr(sTmp2), (' offset:%d' % imm) if imm else ''))
    g.I('s_add_u32 m0, %s, %d' % (sr(sWR), VOFF))
    g.I('s_add_u32 %s, %s, %d' % (sr(sOffBV), sr(sOffA), 16384 - 1024))
    g.I('buffer_load_dwordx4 %s, s[20:23], %s offen lds' % (vr(vOffV), sr(sOffA)))
    g.I('buffer_load_dwordx4 %s, s[20:23], %s offen offset:1024 lds' % (vr(vOffV), sr(sOffBV)))
    g.I('s_mov_b32 %s, 1' % sr(sU))
    g.I('s_cmp_lt_u32 %s, 2' % sr(sN))
    g.I('s_cbranch_scc1 L_no_t1')
    g.ext(dma_tile())
    g.L('L_no_t1')
    stamp(g, 2)
    g.I('v_and_b32 %s, 3, %s' % (vr(vT0), vr(vLane)))
    g.I('v_bfe_u32 %s, %s, 2, 2' % (vr(vT1), vr(vLane)))
    g.I('v_bfe_u32 %s, %s, 4, 1' % (vr(vT2), vr(vLane)))
    g.I('v_lshrrev_b32 %s, 5, %s' % (vr(vT3), vr(vLane)))
    g.I('v_mul_u32_u24 %s, 1056, %s' % (vr(vAK), vr(vT2)))
    g.I('v_lshl_add_u32 %s, %s, 8, %s' % (vr(vAK), vr(vT1), vr(vAK)))
    g.I('v_and_b32 %s, 1, %s' % (vr(vMX), vr(vT1)))
    g.I('v_xor_b32 %s, %s, %s' % (vr(vMX), vr(vMX), vr(vT3)))
    g.I('v_lshl_add_u32 %s, %s, 4, %s' % (vr(vAK), vr(vMX), vr(vAK)))
    g.I('v_mul_u32_u24 %s, 2112, %s' % (vr(vAQ), vr(vT0)))
    g.I('v_add_u32 %s, %s, %s' % (vr(vAQ), vr(vAQ), vr(vAK)))
    g.I('s_mul_i32 %s, %s, %d' % (sr(sTmp), sr(sW), QW))
    g.I('s_add_u32 %s, %s, %d' % (sr(sTmp), sr(sTmp), QBASE))
    g.I('v_add_u32 %s, %s, %s' % (vr(vAQ), sr(sTmp), vr(vAQ)))
    g.I('v_mul_u32_u24 %s, %d, %s' % (vr(vMX), RW, vr(vT0)))
    g.I('v_add_u32 %s, %s, %s' % (vr(vAK), vr(vAK), vr(vMX)))
    g.I('v_mul_u32_u24 %s, %d, %s' % (vr(vAV), RW, vr(vT1)))
    g.I('v_lshl_add_u32 %s, %s, 8, %s' % (vr(vAV), vr(vT3), vr(vAV)))
    g.I('v_lshl_add_u32 %s, %s, 5, %s' % (vr(vAV), vr(vT2), vr(vAV)))
    g.I('v_lshl_add_u32 %s, %s, 3, %s' % (vr(vAV), vr(vT0), vr(vAV)))
    g.I('v_add_u32 %s, %d, %s' % (vr(vAV), VOFF, vr(vAV)))
    g.I('s_mul_i32 %s, %s, %d' % (sr(sTmp), sr(sW), OW))
    g.I('v_and_b32 %s, 31, %s' % (vr(vQQ), vr(vLane)))
    g.I('v_mul_u32_u24 %s, %d, %s' % (vr(vAOW), OROW, vr(vQQ)))
    g.I('v_lshl_add_u32 %s, %s, 3, %s' % (vr(vAOW), vr(vT3), vr(vAOW)))
    g.I('v_add_u32 %s, %s, %s' % (vr(vAOW), sr(sTmp), vr(vAOW)))
    g.I('v_lshrrev_b32 %s, 4, %s' % (vr(vMX), vr(vLane)))
    g.I('v_mul_u32_u24 %s, %d, %s' % (vr(vAOR), OROW, vr(vMX)))
    g.I('v_and_b32 %s, 15, %s' % (vr(vMX), vr(vLane)))
    g.I('v_lshl_add_u32 %s, %s, 4, %s' % (vr(vAOR), vr(vMX), vr(vAOR)))
    g.I('v_add_u32 %s, %s, %s' % (vr(vAOR), sr(sTmp), vr(vAOR)))
    g.I('v_lshlrev_b32 %s, 2, %s' % (vr(vMX), vr(vT3)))
    g.I('v_sub_u32 %s, %s, %s' % (vr(vQQ), vr(vQQ), vr(vMX)))
    g.I('v_mov_b32 %s, 0x%08x' % (vr(vNEG), fbits(-1e30)))
    for r in range(16):
        key = (r & 3) + 8 * (r >> 2)
        g.I('v_cmp_gt_i32 %s, %d, %s' % (sr(sMask + 2 * r, 2), key, vr(vQQ)))
    for r in range(16):
        g.I('v_cndmask_b32 %s, 0, %s, %s' % (vr(vS + r), vr(vNEG), sr(sMask + 2 * r, 2)))
    for r in range(64):
        g.I('v_mov_b32 %s, 0' % vr(vO + r))
    g.I('v_mov_b32 %s, 0' % vr(vL))
    g.I('v_mov_b32 %s, 0' % vr(vL2))
    g.I('v_mov_b32 %s, %s' % (vr(vAKc), vr(vAK)))
    g.I('v_mov_b32 %s, %s' % (vr(vAVc), vr(vAV)))
    g.I('s_cmp_lt_u32 %s, 2' % sr(sN))
    g.I('s_cbranch_scc1 L_w2')
    g.I('s_waitcnt vmcnt(6)')
    g.I('s_branch L_w2d')
    g.L('L_w2')
    g.I('s_waitcnt vmcnt(2)')
    g.L('L_w2d')
    g.I('s_barrier')
    stamp(g, 3)
    for ks in range(8):
        g.I('ds_read_b128 %s, %s offset:%d' % (vr(vQ + 4 * ks, 4), vr(vAQ), 32 * ks))
    g.ext(k_reads())
    g.I('s_waitcnt lgkmcnt(0)')
    g.I('s_barrier')
    g.I('s_mov_b32 %s, 2' % sr(sU))
    g.I('s_cmp_lt_u32 %s, 3' % sr(sN))
    g.I('s_cbranch_scc1 L_no_t23')
    g.ext(dma_tile())
    g.I('s_mov_b32 %s, 3' % sr(sU))
    g.I('s_cmp_lt_u32 %s, 4' % sr(sN))
    g.I('s_cbranch_scc1 L_no_t23')
    g.ext(dma_tile())
    g.L('L_no_t23')
    g.ext(qk_mfma(vr(vS, 16)))
    g.ext(max_tree())
    g.ext(cross_max())
    g.I('v_mov_b32 %s, %s' % (vr(vM), vr(vMX)))
    g.I('v_mul_f32 %s, %s, %s' % (vr(vMC), sr(sC), vr(vMX)))
    g.I('v_add_f32 %s, %s, %s' % (vr(vTHR), sr(sTdc), vr(vMX)))
    g.ext(x_fma())
    stamp(g, 4)
    g.I('s_mov_b32 %s, 0' % sr(sT))
    g.I('s_cmp_gt_u32 %s, 3' % sr(sN))
    g.I('s_cbranch_scc1 L_w8')
    g.I('s_cmp_eq_u32 %s, 3' % sr(sN))
    g.I('s_cbranch_scc1 L_w4')
    g.I('s_waitcnt vmcnt(0)')
    g.I('s_branch L_wd')
    g.L('L_w4')
    g.I('s_waitcnt vmcnt(4)')
    g.I('s_branch L_wd')
    g.L('L_w8')
    g.I('s_waitcnt vmcnt(8)')
    g.L('L_wd')
    g.I('s_barrier')
    g.I('s_cmp_eq_u32 %s, 1' % sr(sN))
    g.I('s_cbranch_scc1 L_tail')
    g.I('s_branch L_body')
    g.L('L_loop')
    g.I('s_waitcnt vmcnt(4)')
    g.I('s_add_u32 %s, %s, 2' % (sr(sTmp), sr(sT)))
    g.I('s_cmp_lt_u32 %s, %s' % (sr(sTmp), sr(sN)))
    g.I('s_cbranch_scc1 L_lw')
    g.I('s_waitcnt vmcnt(0)')
    g.L('L_lw')
    g.I('s_barrier')
    g.I('s_add_u32 %s, %s, 3' % (sr(sU), sr(sT)))
    g.I('s_cmp_ge_u32 %s, %s' % (sr(sU), sr(sN)))
    g.I('s_cbranch_scc1 L_body')
    g.ext(dma_tile())
    g.L('L_body')
    g.I('s_add_u32 %s, %s, 1' % (sr(sTmp), sr(sT)))
    g.I('s_and_b32 %s, %s, 3' % (sr(sTmp), sr(sTmp)))
    g.I('s_mul_i32 %s, %s, %d' % (sr(sTmp), sr(sTmp), SLOT))
    g.I('v_add_u32 %s, %s, %s' % (vr(vAKc), sr(sTmp), vr(vAK)))
    g.I('s_and_b32 %s, %s, 3' % (sr(sTmp2), sr(sT)))
    g.I('s_mul_i32 %s, %s, %d' % (sr(sTmp2), sr(sTmp2), SLOT))
    g.I('v_add_u32 %s, %s, %s' % (vr(vAVc), sr(sTmp2), vr(vAV)))
    g.ext(k_reads())
    g.ext(softmax_half(0))
    g.ext(v_reads(0))
    g.ext(qk_mfma('0'))
    g.ext(softmax_half(1))
    g.ext(v_reads(1))
    g.ext(pv_mfma(0))
    g.ext(pv_mfma(1))
    g.ext(max_tree())
    g.I('v_cmp_gt_f32 vcc, %s, %s' % (vr(vMX), vr(vTHR)))
    g.I('s_cbranch_vccnz L_rare')
    g.L('L_cont')
    g.ext(x_fma())
    g.I('s_add_u32 %s, %s, 1' % (sr(sT), sr(sT)))
    g.I('s_add_u32 %s, %s, 1' % (sr(sTmp), sr(sT)))
    g.I('s_cmp_lt_u32 %s, %s' % (sr(sTmp), sr(sN)))
    g.I('s_cbranch_scc1 L_loop')
    g.L('L_tail')
    g.I('s_and_b32 %s, %s, 3' % (sr(sTmp2), sr(sT)))
    g.I('s_mul_i32 %s, %s, %d' % (sr(sTmp2), sr(sTmp2), SLOT))
    g.I('v_add_u32 %s, %s, %s' % (vr(vAVc), sr(sTmp2), vr(vAV)))
    g.ext(v_reads(0))
    g.ext(softmax_half(0))
    g.ext(pv_mfma(0))
    g.ext(v_reads(1))
    g.ext(softmax_half(1))
    g.ext(pv_mfma(1))
    stamp(g, 5)
    g.I('v_add_f32 %s, %s, %s' % (vr(vL), vr(vL), vr(vL2)))
    g.I('v_mov_b32 %s, %s' % (vr(vT0), vr(vL)))
    g.I('v_permlane32_swap_b32 %s, %s' % (vr(vL), vr(vT0)))
    g.I('v_add_f32 %s, %s, %s' % (vr(vL), vr(vL), vr(vT0)))
    g.I('v_rcp_f32 %s, %s' % (vr(vT1), vr(vL)))
    g.I('s_barrier')
    for db in range(4):
        for rg in range(4):
            r = vO + 16 * db + 4 * rg
            for e in range(4):
                g.I('v_mul_f32 %s, %s, %s' % (vr(r + e), vr(r + e), vr(vT1)))
            p = vS + 2 * ((4 * db + rg) & 7)
            g.I('v_cvt_pk_bf16_f32 %s, %s, %s' % (vr(p), vr(r), vr(r + 1)))
            g.I('v_cvt_pk_bf16_f32 %s, %s, %s' % (vr(p + 1), vr(r + 2), vr(r + 3)))
            g.I('ds_write_b64 %s, %s offset:%d' % (vr(vAOW), vr(p, 2), 64 * db + 16 * rg))
    g.I('s_waitcnt lgkmcnt(0)')
    for i in range(8):
        g.I('ds_read_b128 %s, %s offset:%d' % (vr(vK + 4 * i, 4), vr(vAOR), 4 * OROW * i))
    for i in range(8):
        if i:
            g.I('v_add_u32 %s, 0x4000, %s' % (vr(vOffO), vr(vOffO)))
        g.I('buffer_store_dwordx4 %s, %s, s[24:27], 0 offen%s' % (vr(vK + 4 * i, 4), vr(vOffO), OPT['store_mod']))
    stamp(g, 6)
    if OPT['stamp']:
        g.I('s_waitcnt vmcnt(0)')
        stamp(g, 7)
        g.I('s_getreg_b32 s98, hwreg(HW_REG_HW_ID)')
        g.I('s_waitcnt lgkmcnt(0)')
        g.I('s_lshl_b32 %s, s2, 2' % sr(sTmp))
        g.I('s_add_u32 %s, %s, %s' % (sr(sTmp), sr(sTmp), sr(sW)))
        g.I('s_lshl_b32 %s, %s, 6' % (sr(sTmp), sr(sTmp)))
        g.I('s_mov_b32 s12, s96')
        g.I('s_mov_b32 s13, s97')
        g.I('s_mov_b32 s14, 0x100000')
        for k in range(8):
            g.I('v_mov_b32 %s, s%d' % (vr(vK + k), 80 + 2 * k))
        g.I('v_mov_b32 %s, s98' % vr(vK + 8))
        g.I('v_mov_b32 %s, %s' % (vr(vK + 9), sr(sN)))
        g.I('s_memrealtime s[80:81]')
        g.I('s_waitcnt lgkmcnt(0)')
        g.I('v_mov_b32 %s, s80' % vr(vK + 10))
        g.I('v_mov_b32 %s, 0' % vr(vK + 11))
        g.I('v_mov_b32 %s, %s' % (vr(vT0), sr(sTmp)))
        g.I('s_mov_b64 exec, 1')
        g.I('buffer_store_dwordx4 %s, %s, s[12:15], 0 offen' % (vr(vK, 4), vr(vT0)))
        g.I('buffer_store_dwordx4 %s, %s, s[12:15], 0 offen offset:16' % (vr(vK + 4, 4), vr(vT0)))
        g.I('buffer_store_dwordx4 %s, %s, s[12:15], 0 offen offset:32' % (vr(vK + 8, 4), vr(vT0)))
    if OPT.get('probe'): g.l.append('    ;@RTSTORE')
    g.I('s_endpgm')
    g.L('L_rare')
    g.ext(cross_max())
    g.I('v_max_f32 %s, %s, %s' % (vr(vMX), vr(vMX), vr(vM)))
    g.I('v_sub_f32 %s, %s, %s' % (vr(vT1), vr(vM), vr(vMX)))
    g.I('v_mul_f32 %s, %s, %s' % (vr(vT1), sr(sC), vr(vT1)))
    g.I('v_exp_f32 %s, %s' % (vr(vT1), vr(vT1)))
    g.I('v_mov_b32 %s, %s' % (vr(vM), vr(vMX)))
    g.I('v_mul_f32 %s, %s, %s' % (vr(vMC), sr(sC), vr(vMX)))
    g.I('v_add_f32 %s, %s, %s' % (vr(vTHR), sr(sTdc), vr(vMX)))
    for r in range(64):
        g.I('v_mul_f32 %s, %s, %s' % (vr(vO + r), vr(vO + r), vr(vT1)))
    g.I('v_mul_f32 %s, %s, %s' % (vr(vL), vr(vL), vr(vT1)))
    g.I('v_mul_f32 %s, %s, %s' % (vr(vL2), vr(vL2), vr(vT1)))
    g.I('s_nop 1')
    g.I('s_branch L_cont')
    g.L('L_end')
    g.I('s_endpgm')
    return g.l


def main():
    out = sys.argv[1]
    body = gen()
    body = auto_lgkm(body)
    body, nn = fix_hazards(body)
    idx = {ln.split(':')[0].strip(): k for k, ln in enumerate(body) if ln.split(';')[0].strip().endswith(':')}
    loop = body[idx['L_loop']:idx['L_tail']]
    bad = check_path(loop + loop, 'loop x2')
    rare = body[idx['L_rare']:idx['L_end']]
    bad += check_path(body[idx['L_body']:idx['L_cont']] + rare + body[idx['L_cont']:idx['L_tail']], 'rare')
    assert bad == 0
    tbl = build_table()
    hdr = open('cdna_kernels/%s.s.ref' % NAME).read().split('\n')
    comments = [h for h in hdr if h.startswith(';') and '@launch' not in h]
    o = []
    o += comments
    o.append('; @launch grid=(552,1,1) block=(256,1,1) lds=%d' % LDS_BYTES)
    o.append('.amdgcn_target "amdgcn-amd-amdhsa--gfx950"')
    o.append('.text')
    o.append('.globl %s_kernel' % NAME)
    o.append('.p2align 8')
    o.append('.type %s_kernel,@function' % NAME)
    o.append('%s_kernel:' % NAME)
    o += body
    o.append('.p2align 6')
    o.append('.type L_table,@object')
    o.append('L_table:')
    for e in tbl:
        o.append('    .long 0x%08x, 0x%08x, 0x%08x, 0x%08x' % e)
    o.append('.size L_table, %d' % (16 * len(tbl)))
    o.append('.section .rodata,"a"')
    o.append('.p2align 6')
    o.append('.amdhsa_kernel %s_kernel' % NAME)
    o.append('  .amdhsa_next_free_vgpr %d' % 256)
    o.append('  .amdhsa_next_free_sgpr 102')
    o.append('  .amdhsa_accum_offset 256')
    o.append('  .amdhsa_group_segment_fixed_size 0')
    o.append('  .amdhsa_kernarg_size 56')
    o.append('  .amdhsa_user_sgpr_count 2')
    o.append('  .amdhsa_user_sgpr_kernarg_segment_ptr 1')
    o.append('  .amdhsa_system_sgpr_workgroup_id_x 1')
    o.append('  .amdhsa_float_denorm_mode_32 3')
    o.append('.end_amdhsa_kernel')
    open(out, 'w').write('\n'.join(o) + '\n')
    n_ins = sum(1 for ln in body if ln.startswith('    ') and not ln.strip().startswith(';'))
    print('wrote %s: %d instructions, %d nops inserted' % (out, n_ins, nn))


main()
```

```python
import sys,re
src=open(sys.argv[1]).read()
K=int(sys.argv[3]); what=sys.argv[4]; NSCAN=int(sys.argv[5]) if len(sys.argv)>5 else None
NAME='standalone__ragged_sequences_varlen_flash_attn__ragged_kernel'
m=re.search(r'; @launch grid=\((\d+),1,1\) block=\((\d+),1,1\) lds=(\d+)',src)
g,b,lds=m.groups(); g=int(g)
src=src.replace(m.group(0),'; @launch kernel=%s grid=(%d,1,1) block=(%s,1,1) lds=%s\n; @launch kernel=spin_kernel grid=(1,1,1) block=(64,1,1) lds=0'%(NAME,g,b,lds))
src=src.replace(';@RT0','s_memrealtime s[92:93]\n    s_load_dwordx2 s[96:97], s[0:1], 48')
src=src.replace(';@RT1','s_memrealtime s[94:95]') if 's_memrealtime s[94:95]' not in src else src.replace(';@RT1','s_nop 0')
store='''s_waitcnt vmcnt(0) lgkmcnt(0)
    @END
    s_waitcnt lgkmcnt(0)
    s_mov_b32 s12, s96
    s_mov_b32 s13, s97
    s_mov_b32 s14, 0x100000
    s_mov_b32 s15, 0x20000
    s_lshl_b32 s42, s2, 3
    v_mov_b32 v2, s92
    v_mov_b32 v3, s94
    v_mov_b32 v4, s42
    s_mov_b64 exec, 1
    s_nop 4
    buffer_store_dwordx2 v[2:3], v4, s[12:15], 0 offen'''
if ';@RT1' in open(sys.argv[1]).read():
    store=store.replace('@END','s_nop 0')
else:
    store=store.replace('@END','s_memrealtime s[94:95]')
src=src.replace(';@RTSTORE',store)
spin='''
.text
.globl spin_kernel
.p2align 8
.type spin_kernel,@function
spin_kernel:
    s_cmp_ge_u32 s2, 1
    s_cbranch_scc1 S_end
    s_memrealtime s[20:21]
    s_load_dwordx2 s[4:5], s[0:1], 48
    s_waitcnt lgkmcnt(0)
    s_load_dwordx2 s[6:7], s[4:5], 0
    s_waitcnt lgkmcnt(0)
    s_mov_b32 s8, s6         ; reference
    s_mov_b32 s9, 0x7fffffff ; min start (signed rel)
    s_mov_b32 s10, 0x80000000 ; max end
    s_mov_b32 s11, 0x80000000 ; max start
    s_mov_b32 s12, 0
S_loop:
    s_load_dwordx2 s[6:7], s[4:5], s12
    s_waitcnt lgkmcnt(0)
    s_sub_u32 s6, s6, s8
    s_sub_u32 s7, s7, s8
    s_min_i32 s9, s9, s6
    s_max_i32 s11, s11, s6
    s_max_i32 s10, s10, s7
    s_add_u32 s12, s12, 8
    s_cmp_lt_u32 s12, %d
    s_cbranch_scc1 S_loop
    s_sub_u32 s13, %s, s9
    s_min_u32 s13, s13, 20000      ; bound the spin (200 us / K)
    s_mul_i32 s13, s13, %d
    s_memrealtime s[20:21]
    s_waitcnt lgkmcnt(0)
S_spin:
    s_memrealtime s[22:23]
    s_waitcnt lgkmcnt(0)
    s_sub_u32 s22, s22, s20
    s_cmp_lt_u32 s22, s13
    s_cbranch_scc1 S_spin
S_end:
    s_endpgm
'''%((NSCAN or g)*8,'s10' if what=='dur' else 's11',K)
kd='''
.amdhsa_kernel spin_kernel
  .amdhsa_next_free_vgpr 8
  .amdhsa_next_free_sgpr 40
  .amdhsa_accum_offset 8
  .amdhsa_group_segment_fixed_size 0
  .amdhsa_kernarg_size 56
  .amdhsa_user_sgpr_count 2
  .amdhsa_user_sgpr_kernarg_segment_ptr 1
  .amdhsa_system_sgpr_workgroup_id_x 1
.end_amdhsa_kernel
'''
i=src.index('.section .rodata')
src=src[:i]+spin.lstrip('\n')+src[i:]+kd
open(sys.argv[2],'w').write(src)
```

```python
import sys,re,subprocess
inp,out,K,what,lo,hi=sys.argv[1],sys.argv[2],int(sys.argv[3]),sys.argv[4],int(sys.argv[5]),int(sys.argv[6])
subprocess.run(['python3','probe.py',inp,out,str(K),'dur'],check=True)
s=open(out).read()
i=s.index('    s_mov_b32 s8, s6         ; reference')
j=s.index('    s_min_u32 s13, s13, 20000')
g=int(re.search(r'grid=\((\d+),1,1\) block=\(256',s).group(1))
xsel=sys.argv[7] if len(sys.argv)>7 else ''
upd={'end':'s_max_i32 s10, s10, s7','start':'s_max_i32 s10, s10, s6','minend':'s_min_i32 s11, s11, s7','dur':'s_sub_u32 s7, s7, s6\n    s_max_i32 s10, s10, s7'}[what]
res={'end':'s_sub_u32 s13, s10, s9','start':'s_sub_u32 s13, s10, s9','minend':'s_sub_u32 s13, s11, s9','dur':'s_mov_b32 s13, s10'}[what]
new='''    s_mov_b32 s8, s6         ; reference
    s_mov_b32 s9, 0x7fffffff
    s_mov_b32 s10, 0x80000000
    s_mov_b32 s11, 0x7fffffff
    s_mov_b32 s12, 0
S_loop:
    s_load_dwordx2 s[6:7], s[4:5], s12
    s_waitcnt lgkmcnt(0)
    s_sub_u32 s6, s6, s8
    s_sub_u32 s7, s7, s8
    s_min_i32 s9, s9, s6
    s_cmp_lt_u32 s12, %d
    s_cbranch_scc1 S_skip
    s_cmp_ge_u32 s12, %d
    s_cbranch_scc1 S_skip
%s    %s
S_skip:
    s_add_u32 s12, s12, 8
    s_cmp_lt_u32 s12, %d
    s_cbranch_scc1 S_loop
    %s
'''%(lo*8,hi*8,({'E':'    s_bitcmp1_b32 s12, 5\n    s_cbranch_scc1 S_skip\n','L':'    s_bitcmp0_b32 s12, 5\n    s_cbranch_scc1 S_skip\n','':''}[xsel]),upd,g*8,res)
s=s[:i]+new+s[j:]
open(out,'w').write(s)
```

```python
import re

REG_RE = re.compile(r'^(-|abs\()?([vsa])(\d+)\)?$')
RNG_RE = re.compile(r'^(-)?([vsa])\[(\d+):(\d+)\]$')

TRANS = ('v_exp_f32', 'v_log_f32', 'v_rcp_f32', 'v_rsq_f32', 'v_sqrt_f32', 'v_sin_f32', 'v_cos_f32')


def regs_of(tok):
    tok = tok.strip()
    m = RNG_RE.match(tok)
    if m:
        return [(m.group(2), i) for i in range(int(m.group(3)), int(m.group(4)) + 1)]
    m = REG_RE.match(tok)
    if m:
        return [(m.group(2), int(m.group(3)))]
    if tok == 'vcc':
        return [('s', 'vcc')]
    if tok == 'exec':
        return [('s', 'exec')]
    if tok == 'm0':
        return [('s', 'm0')]
    return []


class Ins:
    __slots__ = ('text', 'op', 'ops', 'kind', 'wr', 'rd', 'mods', 'srcC', 'srcAB', 'passes')

    def __repr__(self):
        return self.text


def parse(line):
    s = line.split(';')[0].split('//')[0].strip()
    if not s or s.endswith(':') or s.startswith('.'):
        return None
    parts = s.split(None, 1)
    op = parts[0]
    rest = parts[1] if len(parts) > 1 else ''
    toks = [t.strip() for t in rest.split(',')] if rest else []
    mods = []
    if toks:
        last = toks[-1].split()
        if last:
            toks[-1] = last[0]
            mods = last[1:]
    i = Ins()
    i.text = s
    i.op = op
    i.ops = toks
    i.mods = mods
    i.wr = []
    i.rd = []
    i.srcC = []
    i.srcAB = []
    i.passes = 0
    base = op.replace('_e32', '').replace('_e64', '')
    R = regs_of
    if op.startswith('v_mfma'):
        i.kind = 'mfma'
        i.wr = R(toks[0])
        i.srcAB = R(toks[1]) + R(toks[2])
        i.srcC = R(toks[3])
        i.rd = i.srcAB + i.srcC
        if '32x32x16' in op:
            i.passes = 8
        elif '16x16x32' in op:
            i.passes = 4
        elif '4x4x4' in op:
            i.passes = 2
        else:
            raise ValueError(op)
    elif op.startswith('v_'):
        i.kind = 'valu'
        if base.startswith('v_cmp'):
            i.wr = R(toks[0])
            for t in toks[1:]:
                i.rd += R(t)
        elif base.startswith('v_permlane32_swap') or base.startswith('v_permlane16_swap'):
            i.wr = R(toks[0]) + R(toks[1])
            i.rd = R(toks[0]) + R(toks[1])
        elif base in ('v_fmac_f32', 'v_dot2c_f32_bf16', 'v_pk_fmac_f16'):
            i.wr = R(toks[0])
            for t in toks:
                i.rd += R(t)
        elif base in ('v_add_co_u32', 'v_addc_co_u32', 'v_sub_co_u32'):
            i.wr = R(toks[0]) + R(toks[1])
            for t in toks[2:]:
                i.rd += R(t)
        else:
            i.wr = R(toks[0])
            for t in toks[1:]:
                i.rd += R(t)
            if base == 'v_cndmask_b32' and len(toks) == 3:
                i.rd += [('s', 'vcc')]
    elif op.startswith('ds_'):
        i.kind = 'ds'
        if op.startswith('ds_read'):
            i.wr = R(toks[0])
            i.rd = R(toks[1])
        elif op.startswith('ds_write'):
            for t in toks:
                i.rd += R(t)
        else:
            raise ValueError(op)
    elif op.startswith('buffer_') or op.startswith('global_'):
        i.kind = 'vmem'
        allmods = ' '.join(mods)
        if op.startswith('buffer_load') and re.search(r'\blds\b', allmods):
            for t in toks:
                i.rd += R(t)
            i.rd += [('s', 'm0')]
            i.kind = 'vmem_lds'
        elif op.startswith('buffer_load'):
            i.wr = R(toks[0])
            for t in toks[1:]:
                i.rd += R(t)
        elif op.startswith('buffer_store') or op.startswith('buffer_atomic'):
            for t in toks:
                i.rd += R(t)
            i.kind = 'vmem_st'
        elif op.startswith('global_store'):
            for t in toks:
                i.rd += R(t)
            i.kind = 'vmem_st'
        elif op.startswith('global_load'):
            i.wr = R(toks[0])
            for t in toks[1:]:
                i.rd += R(t)
        elif op.startswith('buffer_wbl2') or op.startswith('buffer_inv'):
            pass
        else:
            raise ValueError(op)
    elif op.startswith('s_'):
        i.kind = 'salu'
        if op in ('s_waitcnt', 's_barrier', 's_nop', 's_endpgm', 's_branch', 's_setprio', 's_sleep') or op.startswith('s_cbranch'):
            i.kind = 'ctl'
            if op in ('s_cbranch_vccz', 's_cbranch_vccnz'):
                i.rd = [('s', 'vcc')]
        elif op.startswith('s_cmp') or op.startswith('s_bitcmp'):
            for t in toks:
                i.rd += R(t)
        elif op.startswith('s_load') or op in ('s_memtime', 's_memrealtime'):
            i.kind = 'smem'
            i.wr = R(toks[0])
            for t in toks[1:]:
                i.rd += R(t)
        elif 'saveexec' in op:
            i.wr = R(toks[0]) + [('s', 'exec')]
            i.rd = R(toks[1]) + [('s', 'exec')]
        else:
            i.wr = R(toks[0])
            for t in toks[1:]:
                i.rd += R(t)
            if op == 's_movrels_b32':
                i.rd += [('s', 'm0')]
            if op in ('s_addk_i32', 's_mulk_i32', 's_bitset0_b32', 's_bitset1_b32'):
                i.rd += R(toks[0])
    else:
        raise ValueError('unknown op ' + op)
    return i


def states(i):
    if i.op == 's_nop':
        return int(i.ops[0], 0) + 1
    return 1


def is_trans(i):
    b = i.op.replace('_e32', '').replace('_e64', '')
    return b in TRANS


XDL_D_TO_VALU = {2: 5, 4: 8, 8: 12}
XDL_D_TO_AB = {2: 5, 4: 8, 8: 12}
XDL_D_TO_C_OVERLAP = {2: 4, 4: 6, 8: 10}
XDL_D_TO_C_SAME = {2: 2, 4: 0, 8: 0}
XDL_C_WAR = {2: 1, 4: 3, 8: 7}


def vset(rs):
    return set(r for r in rs if r[0] in 'va')


def sset(rs):
    return set(r for r in rs if r[0] == 's')


def need_states(prev, cur):
    need = 0
    pw_v = vset(prev.wr)
    cr_v = vset(cur.rd)
    cw_v = vset(cur.wr)
    if prev.kind == 'valu':
        if cur.kind == 'mfma' and pw_v & cr_v:
            need = max(need, 2)
        if cur.kind == 'valu':
            b = cur.op
            if b.startswith('v_permlane') and pw_v & cr_v:
                need = max(need, 2)
            if (b.startswith('v_readfirstlane') or b.startswith('v_readlane')) and pw_v & cr_v:
                need = max(need, 1)
            if 'dpp' in cur.text or 'row_' in cur.text or 'quad_perm' in cur.text:
                if pw_v & cr_v:
                    need = max(need, 2)
            if is_trans(prev) and not is_trans(cur) and pw_v & cr_v:
                need = max(need, 1)
            if sset(prev.wr) & sset(cur.rd):
                need = max(need, 2)
        if is_trans(prev) and cur.kind == 'mfma' and pw_v & cr_v:
            need = max(need, 2)
        if cur.kind in ('vmem', 'vmem_lds', 'vmem_st') and sset(prev.wr) & sset(cur.rd):
            need = max(need, 5)
        if cur.kind in ('salu', 'smem') and sset(prev.wr) & sset(cur.rd):
            need = max(need, 4)
    if prev.kind == 'mfma':
        p = prev.passes
        if cur.kind == 'mfma':
            if pw_v & vset(cur.srcAB):
                need = max(need, XDL_D_TO_AB[p])
            cC = vset(cur.srcC)
            if pw_v & cC:
                if pw_v == cC and cur.passes == p:
                    need = max(need, XDL_D_TO_C_SAME[p])
                else:
                    need = max(need, XDL_D_TO_C_OVERLAP[p])
            elif pw_v & cw_v:
                need = max(need, XDL_D_TO_C_OVERLAP[p])
        elif cur.kind in ('valu', 'ds', 'vmem', 'vmem_lds', 'vmem_st'):
            if pw_v & (cr_v | cw_v):
                need = max(need, XDL_D_TO_VALU[p])
            if cur.kind == 'valu' and vset(prev.srcC) & cw_v:
                need = max(need, XDL_C_WAR[p])
    if prev.kind == 'salu':
        if ('s', 'm0') in prev.wr and (cur.kind == 'vmem_lds' or cur.op.startswith('s_movrel')):
            need = max(need, 1)
    if prev.kind == 'vmem_st' and ('dwordx4' in prev.op or 'dwordx3' in prev.op):
        data = vset(regs_of(prev.ops[0])) if prev.op.startswith('buffer') else vset(regs_of(prev.ops[1]))
        if data & cw_v:
            need = max(need, 2)
    return need


MAXDIST = 20


def fix_hazards(lines):
    out = []
    hist = []
    n_ins = 0
    for ln in lines:
        i = parse(ln)
        if i is None:
            out.append(ln)
            continue
        need = 0
        dist = 0
        for p in reversed(hist):
            r = need_states(p, i)
            if r > dist:
                need = max(need, r - dist)
            dist += states(p)
            if dist >= MAXDIST:
                break
        while need > 0:
            k = min(need, 16)
            nop = '    s_nop %d' % (k - 1)
            out.append(nop)
            hist.append(parse(nop))
            need -= k
            n_ins += 1
        out.append(ln)
        hist.append(i)
        if len(hist) > 64:
            hist = hist[-40:]
    return out, n_ins


def check_path(lines, name=''):
    hist = []
    bad = 0
    for ln in lines:
        i = parse(ln)
        if i is None:
            continue
        dist = 0
        for p in reversed(hist):
            r = need_states(p, i)
            if r > dist:
                print('HAZARD[%s]: %s -> %s needs %d has %d' % (name, p.text, i.text, r, dist))
                bad += 1
            dist += states(p)
            if dist >= MAXDIST:
                break
        hist.append(i)
    return bad


WAIT_RE = re.compile(r'lgkmcnt\((\d+)\)')


def auto_lgkm(lines):
    out = []
    pend = []
    smem = set()
    for ln in lines:
        i = parse(ln)
        s = ln.split(';')[0].strip()
        if i is None:
            if s.endswith(':') and pend and '@carry' not in ln:
                live = [p for p in pend if p]
                assert not live, 'pending ds reads at label %s: %s' % (s, pend)
            out.append(ln)
            continue
        if i.op == 's_waitcnt':
            m = WAIT_RE.search(i.text)
            if m:
                k = int(m.group(1))
                if k == 0:
                    smem = set()
                while len(pend) > k:
                    pend.pop(0)
            out.append(ln)
            continue
        if i.kind == 'smem':
            assert not (smem & set(i.rd)), 'smem result used before wait: ' + ln
            smem |= set(i.wr)
            smem.add(('x', 'pending'))
            out.append(ln)
            continue
        touched = set(i.rd) | set(i.wr)
        assert not (smem & touched), 'smem result used before wait: ' + ln
        idx = -1
        for k, p in enumerate(pend):
            if p & touched:
                idx = k
        if idx >= 0:
            remain = len(pend) - 1 - idx
            if smem:
                remain = 0
                smem = set()
                idx = len(pend) - 1
            assert remain <= 15
            out.append('    s_waitcnt lgkmcnt(%d)' % remain)
            pend = pend[idx + 1:]
        if i.kind == 'ds':
            pend.append(set(i.wr))
        if i.kind == 'ctl' and (i.op.startswith('s_cbranch') or i.op == 's_branch') and '@carry' not in ln:
            live = [p for p in pend if p]
            assert not live, 'pending ds reads at branch %s: %s' % (ln, pend)
        out.append(ln)
    return out


def check_cfg(lines):
    ins = []
    labels = {}
    for ln in lines:
        s = ln.split(';')[0].strip()
        if s.endswith(':'):
            labels[s[:-1]] = len(ins)
            continue
        i = parse(ln)
        if i is not None:
            ins.append(i)
    n = len(ins)
    preds = [[] for _ in range(n + 1)]
    for k, i in enumerate(ins):
        if i.op == 's_endpgm':
            continue
        if i.op == 's_branch':
            preds[labels[i.ops[0]]].append(k)
            continue
        if i.op.startswith('s_cbranch'):
            preds[labels[i.ops[0]]].append(k)
        preds[k + 1].append(k)
    bad = 0
    for k, cur in enumerate(ins):
        if cur.kind in ('ctl', 'salu', 'smem') and cur.kind == 'ctl':
            continue
        seen = {}
        stack = [(p, 0) for p in preds[k]]
        while stack:
            p, dist = stack.pop()
            if p in seen and seen[p] <= dist:
                continue
            seen[p] = dist
            r = need_states(ins[p], cur)
            if r > dist:
                print('HAZARD(cfg): %s -> %s needs %d has %d' % (ins[p].text, cur.text, r, dist))
                bad += 1
            nd = dist + states(ins[p])
            if nd < MAXDIST:
                for q in preds[p]:
                    stack.append((q, nd))
    return bad
```

```python
import math
import struct
import sys
from asmlib import fix_hazards, auto_lgkm, check_cfg, parse

NAME = 'standalone__ragged_sequences_varlen_flash_attn__ragged'
CU = [0, 267, 391, 734, 1145, 1486, 1586, 1793, 1920, 2261, 2733, 2860, 2978, 3276, 3550, 4058, 4249]
GROUPS_BAL = [[0, 1, 2, 4, 5, 7, 8, 9], [3, 6, 10, 11, 12, 13, 14, 15]]
GROUPS_EL = [[14, 9, 3, 0, 1, 5, 7, 10], [2, 4, 8, 12, 13, 6, 15, 11]]
GROUPS_58 = [[14, 9, 3, 0, 1, 5, 7], [2, 4, 8, 12, 13, 6, 15, 11, 10]]

OPT = dict(align=0, shift=0, store2=None, icwarm=0, imm=False, sched=1, epi2=True, o64=False, qkstamp=False, v1late=True, ramp=None, setup_first=True, zmfma=True, pack=1, thr1=0, dual=True, dual_w=4.6, tbl=True, pthr=11, thr_n=0, prio_short=False, dbg=False, dummy=0, dummy_skip=False, rot=True, novm=False, grid=0, qmod='', kvmod='', nostore=False, itstamp=False, epistamp=False, qdir=False, odir=False, order=0, m16=True, groups='EL', throttle=0, thr_from=256, bench=0, drop='', stamp=False, store_mod=' nt',
           prio=0, probe=0, prio_n=6)
for a in sys.argv[2:]:
    k, v = a.split('=', 1)
    OPT[k] = eval(v)

SLOT = 8448
RW = 2112
VOFF = 4 * SLOT
QW = 8448
OROW = 272
OW = 32 * OROW
LDS_BYTES = 9 * SLOT


def fbits(x):
    return struct.unpack('<I', struct.pack('<f', x))[0]


C_SCALE = (128 ** -0.5) * math.log2(math.e)
T_DEFER = 8.0


def NWG():
    return (512 if OPT['groups'] in ('58', 'PACK') else 488) if OPT['dual'] else 552


def pack_lists():
    import json
    per = json.load(open(OPT.get('packfile', 'pack.json')))
    W = lambda n, dual: 5430 if dual else (2500 if n == 1 else 1900 + 614 * n)
    out = []
    for units in per:
        items = []
        for s, kvh, dual in units:
            L = CU[s + 1] - CU[s]
            n_tot = (L + 31) // 32
            for j in range(n_tot):
                if j == 0 and dual:
                    continue
                items.append((j + 1, L, s, kvh, j, 1 if (dual and j == 1) else 0))
        items.sort(key=lambda it: (-W(it[0], it[5]), -it[1], it[2], it[3]))
        first = items[:32]
        rest = items[32:][::-1]
        out.append(first + [None] * (32 - len(rest)) + rest)
    return out


def build_table():
    if OPT['groups'] == 'PACK':
        return finish_table(pack_lists())
    per_xcd = []
    groups = {'EL': GROUPS_EL, 'BAL': GROUPS_BAL, '58': GROUPS_58}[OPT['groups']]
    for x in range(8):
        items = []
        for rank, s in enumerate(groups[x >> 2]):
            kvh = ((x + rank) & 3) if OPT['rot'] else (x & 3)
            L = CU[s + 1] - CU[s]
            n = (L + 31) // 32
            for j in range(n):
                items.append((j + 1, L, s, kvh, j))
        items.sort(key=lambda it: (-it[0], -it[1], it[2]))
        if OPT['dual']:
            items = [it for it in items if it[0] != 1]
            first = items[:32]
            rest = items[32:]
            size = lambda it: OPT['dual_w'] if it[0] == 2 else it[0]
            rest.sort(key=lambda it: (size(it), it[1]))
            nfree = 32 - len(rest)
            if OPT['groups'] == '58':
                second = [None] * nfree + rest
                per_xcd.append(first + second)
            else:
                first = first[nfree:] + first[:nfree]
                per_xcd.append(first + rest)
            continue
        assert len(items) == 69
        if OPT['order'] == 0:
            first = items[:32]
            rest = items[32:]
            late = rest[-5:]
            mid = rest[:-5]
            second = list(reversed(mid))
        else:
            tiny = items[-5:]
            late = items[-10:-5]
            big = items[:27]
            mid = items[27:-10]
            pos = [24, 28, 29, 30, 31]
            first, second = [], []
            bi, ti = 0, 0
            small = list(reversed(mid[5:]))
            si = 0
            for k in range(32):
                if k in pos:
                    first.append(tiny[ti])
                    second.append(mid[ti])
                    ti += 1
                else:
                    first.append(big[bi])
                    bi += 1
                    second.append(small[si])
                    si += 1
        per_xcd.append(first + second + late)
    return finish_table([[None if it is None else it + (1 if (OPT['dual'] and it[0] == 2) else 0,) for it in lst] for lst in per_xcd])


def finish_table(per_xcd):
    table = []
    nper = len(per_xcd[0])
    for w in range(8 * nper):
        lst = per_xcd[w & 7]
        k = w >> 3
        if lst[k] is None:
            table.append((0, 0, 0, 0, 0, 0, 0, 0))
            continue
        n, L, s, kvh, j, isdual = lst[k]
        if k < 32:
            hi = n >= OPT['pthr'] or (n <= 2 and not OPT['dual'])
            thr = n < OPT['thr_n'] and n > 2
        elif k < 64:
            n_other = lst[k - 32][0] if lst[k - 32] else 0
            hi = not (n_other >= OPT['pthr'])
            thr = True
        else:
            hi = True
            thr = OPT.get('thr_late', True)
        flags = (1 if hi else 0) | ((8 if (k < 32 and OPT['thr1']) else 2) if thr else 0) | (4 if isdual else 0)
        if OPT['bench']:
            n, L, s, kvh, j = 16, 508, 14, w & 3, 15
        start = CU[s]
        tok0 = start + 32 * j
        nvalid = min(32, L - 32 * j)
        e0 = tok0 * 4096 + kvh * 1024
        e1 = (nvalid - 1) * 4096 + 1024
        e2 = start * 1024 + kvh * 256
        e3 = (L - 1) * 1024 + 256
        e4 = j * 32768
        e6 = ((n - 1) & 3) * SLOT
        table.append((e0, e1, e2, e3, e4, n, e6, flags))
    return table


vQ = 2
vO = 34
vS = 98
vX = 114
vP = 130
vK = 138
vV = 170
vOffK = 202
vOffK2 = 203
vOffV = 204
vOffV2 = 205
vAK = 206
vAV = 207
vAVt = 208
vAVc = 209
vAKc = 239
vMC = 210
vTHR = 211
vL = 212
vL2 = 213
vMX = 214
vMX2 = 215
vT0 = 216
vT1 = 217
vT2 = 218
vT3 = 219
vE = 220
vM = 228
vC = 229
vNEG = 230
vLane = 231
vQQ = 232
vOffQ = 233
vAQ = 234
vOffO = 235
vOffQ2 = 235
vAOW = 236
vAOR = 237
vRow = 238
vSt = 250
vRowA = 248
vRowB = 249
vSel = 240
vLs = 244

sW = 30
sN = 31
sOffA = 40
sOffV = 41
sA = 60
sWRV = 42
sFlags = 39
sQst = 59
sTmp = 43
sTmp2 = 44
sWR = 45
sCnt = 46
sTdc = 47
sQoff = 48
sMask = 64


def vr(b, n=1):
    return 'v%d' % b if n == 1 else 'v[%d:%d]' % (b, b + n - 1)


def sr(b, n=1):
    return 's%d' % b if n == 1 else 's[%d:%d]' % (b, b + n - 1)


class G:
    def __init__(self):
        self.l = []

    def I(self, s):
        self.l.append('    ' + s)

    def L(self, s, carry=False):
        self.l.append(s + ':' + (' ; @carry' if carry else ''))

    def ext(self, lst):
        for s in lst:
            self.I(s)

    def mark(self, s):
        self.l.append('    ;' + s)


def stamp(g, k, pro=False):
    if OPT['dbg']:
        if k in (0, 3, 4, 5):
            g.I('s_memrealtime s[%d:%d]' % (72 + 2 * k, 73 + 2 * k))
        return
    if pro and (OPT['epistamp'] or (OPT['qkstamp'] and k != 3)):
        return
    if OPT['stamp']:
        g.I('s_memtime s[%d:%d]' % (72 + 2 * k, 73 + 2 * k))


def dma_k(so=None):
    m = OPT['kvmod']
    so = sOffA if so is None else so
    return ['buffer_load_dwordx4 %s, s[16:19], %s offen%s lds' % (vr(vOffK), sr(so), m),
            'buffer_load_dwordx4 %s, s[16:19], %s offen offset:1056%s lds' % (vr(vOffK2), sr(so), m)]


def dma_v(so=None):
    m = OPT['kvmod']
    so = sOffA if so is None else so
    return ['buffer_load_dwordx4 %s, s[20:23], %s offen%s lds' % (vr(vOffV), sr(so), m),
            'buffer_load_dwordx4 %s, s[20:23], %s offen offset:1024%s lds' % (vr(vOffV2), sr(so), m)]


def m0_k(slot):
    return 's_add_u32 m0, %s, %d' % (sr(sWR), slot * SLOT)


def m0_v(slot):
    return 's_add_u32 m0, %s, %d' % (sr(sWR), slot * SLOT + VOFF)


def dec(r):
    return 's_sub_u32 %s, %s, 0x8000' % (sr(r), sr(r))


NEXT_TILE = dec(sOffA)


def dma_tile(slot):
    return [m0_k(slot), NEXT_TILE] + dma_k() + [m0_v(slot), 's_nop 0'] + dma_v()


def k_reads(slot, addr=None):
    a = vAK if addr is None else addr
    return ['ds_read_b128 %s, %s offset:%d' % (vr(vK + 4 * ks, 4), vr(a), slot * SLOT + 32 * ks) for ks in range(8)]


def v_reads(addr, slot):
    o = []
    for s in range(2):
        for db in range(4):
            f = vV + 16 * s + 4 * db
            for jj in range(2):
                o.append('ds_read_b64_tr_b16 %s, %s offset:%d' % (vr(f + 2 * jj, 2), vr(addr), slot * SLOT + (4 * s + 2 * jj) * 256 + 64 * db))
    return o


def qk_mfma(first_c):
    o = []
    for ks in range(8):
        c = first_c if ks == 0 else vr(vS, 16)
        o.append('v_mfma_f32_32x32x16_bf16 %s, %s, %s, %s' % (vr(vS, 16), vr(vK + 4 * ks, 4), vr(vQ + 4 * ks, 4), c))
    return o


def pv_mfma(s):
    o = []
    for db in range(4):
        o.append('v_mfma_f32_32x32x16_bf16 %s, %s, %s, %s' % (vr(vO + 16 * db, 16), vr(vV + 16 * s + 4 * db, 4), vr(vP + 4 * s, 4), vr(vO + 16 * db, 16)))
    return o


def sum_mfma(s):
    return 'v_mfma_f32_16x16x32_bf16 %s, %s, %s, %s' % (vr(vLs, 4), vr(vSel, 4), vr(vP + 4 * s, 4), vr(vLs, 4))


def exps():
    return ['v_exp_f32 %s, %s' % (vr(vE + (r & 7)), vr(vX + r)) for r in range(16)]


def cvts():
    o = []
    for p in range(8):
        e = vE + ((2 * p) & 7)
        c = ['v_cvt_pk_bf16_f32 %s, %s, %s' % (vr(vP + p), vr(e), vr(e + 1))]
        if not OPT['m16']:
            c = ['v_add_f32 %s, %s, %s' % (vr(vL), vr(vL), vr(e)), 'v_add_f32 %s, %s, %s' % (vr(vL2), vr(vL2), vr(e + 1))] + c
        o.append(c)
    return o


def max_tree():
    o = []
    o.append('v_max3_f32 %s, %s, %s, %s' % (vr(vMX), vr(vS), vr(vS + 1), vr(vS + 2)))
    o.append('v_max3_f32 %s, %s, %s, %s' % (vr(vMX2), vr(vS + 3), vr(vS + 4), vr(vS + 5)))
    o.append('v_max3_f32 %s, %s, %s, %s' % (vr(vMX), vr(vMX), vr(vS + 6), vr(vS + 7)))
    o.append('v_max3_f32 %s, %s, %s, %s' % (vr(vMX2), vr(vMX2), vr(vS + 8), vr(vS + 9)))
    o.append('v_max3_f32 %s, %s, %s, %s' % (vr(vMX), vr(vMX), vr(vS + 10), vr(vS + 11)))
    o.append('v_max3_f32 %s, %s, %s, %s' % (vr(vMX2), vr(vMX2), vr(vS + 12), vr(vS + 13)))
    o.append('v_max3_f32 %s, %s, %s, %s' % (vr(vMX), vr(vMX), vr(vS + 14), vr(vS + 15)))
    o.append('v_max_f32 %s, %s, %s' % (vr(vMX), vr(vMX), vr(vMX2)))
    return o


def x_fma():
    return ['v_fma_f32 %s, %s, %s, -%s' % (vr(vX + r), vr(vS + r), vr(vC), vr(vMC)) for r in range(16)]


def cross_max():
    return ['v_mov_b32 %s, %s' % (vr(vT0), vr(vMX)),
            'v_permlane32_swap_b32 %s, %s' % (vr(vMX), vr(vT0)),
            'v_max_f32 %s, %s, %s' % (vr(vMX), vr(vMX), vr(vT0))]


def flat(*a):
    o = []
    for x in a:
        if isinstance(x, str):
            o.append(x)
        else:
            o += flat(*x)
    return o


def body(g, tag, vwait, exit_ins, p=None, dyn=None, vdma=False, kdma=False):
    qk = qk_mfma('0')
    pre = []
    if p is not None:
        tr = v_reads(vAV, p)
        kr = k_reads((p + 2) & 3)
        mv = [m0_v((p + 3) & 3)]
        mk = [m0_k((p + 1) & 3)]
    else:
        tr = v_reads(vAVc, 0)
        kr = k_reads(0, vAKc)
        pre = ['v_add_u32 %s, %s, %s' % (vr(vAVc), sr(sA + dyn[0]), vr(vAV)),
               'v_add_u32 %s, %s, %s' % (vr(vAKc), sr(sA + dyn[1]), vr(vAK))]
        mv = ['s_add_u32 m0, %s, %s' % (sr(sA + dyn[2]), sr(sWRV))] if vdma else []
        mk = []
    e = exps()
    c = cvts()
    mx = max_tree()
    f = x_fma()
    pv0 = pv_mfma(0)
    pv1 = pv_mfma(1)
    m16 = OPT['m16']
    if vdma:
        dv = dma_v(sOffV)
        dcv = [dec(sOffV)]
    else:
        dv, mv, dcv = [[], []], [], []
    if kdma:
        dk = dma_k(sOffA)
        dck = [dec(sOffA)]
    else:
        dk, mk, dck = [[], []], [], []
    cmp_ = 'v_cmp_gt_f32 vcc, %s, %s' % (vr(vMX), vr(vTHR))
    wait = 's_waitcnt vmcnt(%d) lgkmcnt(0)' % vwait
    if OPT['novm']:
        wait = 's_waitcnt lgkmcnt(0)'
    seq = []
    if OPT['itstamp']:
        seq += ['s_memtime s[88:89]']
    seq += flat(pre, 's_waitcnt lgkmcnt(0)')
    if OPT['itstamp']:
        seq += ['v_mov_b32 v249, s88', 'ds_write_b32 v248, v249', 'v_add_u32 v248, 4, v248']
    if OPT['sched'] == 0:
        seq += flat(qk[0], mv, dcv, tr[0:3], e[0])
        seq += flat(qk[1], dv[0], tr[3:5], e[1], e[2])
        seq += flat(qk[2], tr[5:8], c[0], e[3])
        seq += flat(qk[3], tr[8:11], e[4], c[1])
        seq += flat(qk[4], tr[11:14], e[5])
        seq += flat(qk[5], dv[1], tr[14:16], e[6], c[2])
        seq += flat(qk[6], e[7], e[8], e[9])
        seq += flat(qk[7], c[3], e[10], c[4])
        seq += flat(wait, pv0[0], 's_barrier', mk, dck, e[11], e[12])
        seq += flat(pv0[1], dk[0], kr[0:2], c[5], e[13], mx[0])
        seq += flat(pv0[2], kr[2:4], e[14], e[15])
        seq += flat(pv0[3], kr[4:6], c[6], c[7], mx[1], mx[2])
        if m16:
            seq += flat(sum_mfma(0), kr[6:8])
        else:
            seq += flat(kr[6:8])
        seq += flat(pv1[0], dk[1], mx[3:8])
        seq += flat(pv1[1], cmp_, f[0:5])
        seq += flat(pv1[2], f[5:11])
        seq += flat(pv1[3], f[11:16])
        if m16:
            seq += flat(sum_mfma(1))
    else:
        seq += flat(qk[0], mv, tr[0:3], e[0])
        seq += flat(qk[1], dv[0], tr[3:6], e[1])
        seq += flat(qk[2], tr[6:9], e[2], c[0])
        seq += flat(qk[3], tr[9:11], e[3], e[4])
        seq += flat(qk[4], tr[11:14], e[5], c[1])
        seq += flat(qk[5], dv[1], tr[14:16], e[6], c[2])
        seq += flat(qk[6], dcv, e[7], e[8], c[3])
        seq += flat(qk[7], e[9], e[10], c[4])
        seq += flat(wait, pv0[0], 's_barrier', mk, dck, e[11])
        seq += flat(pv0[1], dk[0], kr[0:2], e[12], c[5])
        seq += flat(pv0[2], kr[2:4], e[13], e[14])
        seq += flat(pv0[3], kr[4:6], e[15], c[6], c[7])
        if m16:
            seq += flat(sum_mfma(0), kr[6:8])
        else:
            seq += flat(kr[6:8])
        seq += flat(pv1[0], dk[1], mx[0:5])
        seq += flat(pv1[1], mx[5:8], cmp_, f[0:2])
        seq += flat(pv1[2], f[2:8])
        seq += flat(pv1[3], f[8:14])
        if m16:
            seq += flat(sum_mfma(1))
        seq += flat(f[14:16])
    g.ext(seq)
    g.ext(exit_ins[:-1])
    g.I('s_cbranch_vccnz L_rare_%s ; @carry' % tag)
    g.L('L_cont_%s' % tag, carry=True)
    g.ext(exit_ins[-1:])


def rare(g, tag):
    g.L('L_rare_%s' % tag, carry=True)
    g.ext(cross_max())
    g.I('v_max_f32 %s, %s, %s' % (vr(vMX), vr(vMX), vr(vM)))
    g.I('v_sub_f32 %s, %s, %s' % (vr(vT1), vr(vM), vr(vMX)))
    g.I('v_mul_f32 %s, %s, %s' % (vr(vT1), vr(vC), vr(vT1)))
    g.I('v_exp_f32 %s, %s' % (vr(vT1), vr(vT1)))
    g.I('v_mov_b32 %s, %s' % (vr(vM), vr(vMX)))
    g.I('v_mul_f32 %s, %s, %s' % (vr(vMC), vr(vC), vr(vMX)))
    g.I('v_add_f32 %s, %s, %s' % (vr(vTHR), sr(sTdc), vr(vMX)))
    g.ext(x_fma())
    if OPT['m16']:
        g.I('v_mov_b32 %s, %s' % (vr(vT2), vr(vT1)))
        g.I('v_mov_b32 %s, %s' % (vr(vT3), vr(vT1)))
        g.I('v_permlane16_swap_b32 %s, %s' % (vr(vT2), vr(vT3)))
        g.I('v_mul_f32 %s, %s, %s' % (vr(vLs), vr(vLs), vr(vT1)))
        g.I('v_mul_f32 %s, %s, %s' % (vr(vLs + 1), vr(vLs + 1), vr(vT3)))
    else:
        g.I('v_mul_f32 %s, %s, %s' % (vr(vL), vr(vL), vr(vT1)))
        g.I('v_mul_f32 %s, %s, %s' % (vr(vL2), vr(vL2), vr(vT1)))
    for r in range(64):
        g.I('v_mul_f32 %s, %s, %s' % (vr(vO + r), vr(vO + r), vr(vT1)))
    g.I('s_nop 1')
    g.I('s_branch L_cont_%s ; @carry' % tag)


def decode_imm(g):
    assert OPT['groups'] == '58' and OPT['rot']
    tbl = build_table()
    starts = {CU[i] * 1024: i for i in range(16)}
    blocks = []
    for grp in range(2):
        seqs = GROUPS_58[grp]
        ent = []
        for k in range(64):
            e = tbl[8 * k + 4 * grp]
            if e[5] == 0:
                ent.append(0)
                continue
            s_ = starts[e[2] & ~0x3ff]
            ent.append(seqs.index(s_) | ((e[5] - 1) << 4) | (e[7] << 8) | (1 << 12))
            for x in range(4):
                o = tbl[8 * k + 4 * grp + x]
                kvh = (4 * grp + x + seqs.index(s_)) & 3
                assert o[5] == e[5] and o[7] == e[7] and o[2] == CU[s_] * 1024 + kvh * 256
        blocks.append(([ent[2 * i] | (ent[2 * i + 1] << 16) for i in range(32)],
                       [CU[s_] | ((CU[s_ + 1] - CU[s_]) << 16) for s_ in seqs]))
    g.I('s_bitcmp1_b32 s2, 2')
    g.I('s_cbranch_scc1 L_grp1')
    for grp in range(2):
        if grp:
            g.L('L_grp1')
        for i, v in enumerate(blocks[grp][0]):
            g.I('s_mov_b32 s%d, 0x%x' % (64 + i, v))
        for i, v in enumerate(blocks[grp][1]):
            g.I('s_mov_b32 s%d, 0x%x' % (48 + i, v))
        if grp == 0:
            g.I('s_branch L_grpd')
    g.L('L_grpd')
    g.I('s_lshr_b32 m0, s2, 4')
    g.I('s_and_b32 s3, s2, 7')
    g.I('s_movrels_b32 s39, s64')
    g.I('s_lshr_b32 s38, s39, 16')
    g.I('s_bitcmp1_b32 s2, 3')
    g.I('s_cselect_b32 s39, s38, s39')
    g.I('s_bitcmp1_b32 s39, 12')
    g.I('s_cbranch_scc0 %s' % ('L_empty' if OPT['probe'] else 'L_end'))
    g.I('s_and_b32 s38, s39, 15')
    g.I('s_mov_b32 m0, s38')
    g.I('s_add_u32 s3, s3, s38')
    g.I('s_movrels_b32 s35, s48')
    g.I('s_and_b32 s3, s3, 3')
    g.I('s_bfe_u32 s36, s39, 0x40004')
    g.I('s_bfe_u32 s39, s39, 0x40008')
    g.I('s_and_b32 s34, s35, 0xffff')
    g.I('s_lshr_b32 s35, s35, 16')
    g.I('s_lshl_b32 s37, s36, 5')
    g.I('s_add_u32 s32, s34, s37')
    g.I('s_sub_u32 s33, s35, s37')
    g.I('s_min_u32 s33, s33, 32')
    g.I('s_lshl_b32 s32, s32, 12')
    g.I('s_lshl_b32 s37, s3, 10')
    g.I('s_add_u32 s32, s32, s37')
    g.I('s_lshl_b32 s33, s33, 12')
    g.I('s_sub_u32 s33, s33, 3072')
    g.I('s_lshl_b32 s34, s34, 10')
    g.I('s_lshl_b32 s37, s3, 8')
    g.I('s_add_u32 s34, s34, s37')
    g.I('s_lshl_b32 s35, s35, 10')
    g.I('s_sub_u32 s35, s35, 768')
    g.I('s_and_b32 s38, s36, 3')
    g.I('s_mul_i32 s38, s38, %d' % SLOT)
    g.I('s_add_u32 s37, s36, 1')
    g.I('s_lshl_b32 s36, s36, 15')


def gen():
    g = G()
    m16 = OPT['m16']
    assert not OPT['qdir'] and not OPT['odir'] and not OPT['imm'] and OPT['epi2']
    g.I('s_load_dwordx8 s[4:11], s[0:1], 0')
    stamp(g, 0)
    if OPT['stamp']:
        g.I('s_memrealtime s[90:91]')
    if OPT['probe'] and OPT['probe'] < 10:
        g.mark('@RT0')
    if OPT['probe'] >= 10:
        g.I('s_load_dwordx2 s[96:97], s[0:1], 48')
    g.I('s_getpc_b64 s[28:29]')
    g.L('L_pc')
    if OPT['icwarm']:
        g.I('s_mov_b64 s[98:99], s[28:29]')
    g.I('s_lshl_b32 s3, s2, 5')
    g.I('s_add_u32 s28, s28, L_table-L_pc')
    g.I('s_addc_u32 s29, s29, 0')
    g.I('s_cmp_ge_u32 s2, %d' % NWG())
    g.I('s_cbranch_scc1 L_end')
    g.I('s_load_dwordx8 s[32:39], s[28:29], s3')
    g.I('s_load_dwordx2 s[56:57], s[0:1], 32')
    if OPT['stamp']:
        g.I('s_load_dwordx2 s[96:97], s[0:1], 48')
    g.mark(' ---- lane offsets of the LDS-DMA loads, while the scalar loads are in flight ----')
    g.I('v_lshrrev_b32 %s, 6, v0' % vr(vT0))
    g.I('v_and_b32 %s, 63, v0' % vr(vLane))
    g.I('v_readfirstlane_b32 %s, %s' % (sr(sW), vr(vT0)))
    g.I('v_lshrrev_b32 %s, 4, %s' % (vr(vT1), vr(vLane)))
    g.I('v_and_b32 %s, 15, %s' % (vr(vT2), vr(vLane)))
    g.I('v_and_b32 %s, 1, %s' % (vr(vT3), vr(vT1)))
    g.I('v_xor_b32 %s, %s, %s' % (vr(vT3), vr(vT3), vr(vT2)))
    g.I('v_lshlrev_b32 %s, 12, %s' % (vr(vOffV), vr(vT1)))
    g.I('v_lshlrev_b32 %s, 14, %s' % (vr(vOffQ), vr(vT1)))
    g.I('s_lshl_b32 %s, %s, 10' % (sr(sTmp), sr(sW)))
    g.I('s_lshl_b32 %s, %s, 8' % (sr(sTmp2), sr(sW)))
    g.I('s_mul_i32 %s, %s, %d' % (sr(sWR), sr(sW), RW))
    g.I('v_add_u32 %s, %s, %s' % (vr(vOffV), sr(sTmp), vr(vOffV)))
    g.I('v_add_u32 %s, %s, %s' % (vr(vOffQ), sr(sTmp2), vr(vOffQ)))
    g.I('v_lshl_add_u32 %s, %s, 4, %s' % (vr(vOffK), vr(vT3), vr(vOffV)))
    g.I('v_lshl_add_u32 %s, %s, 4, %s' % (vr(vOffQ), vr(vT3), vr(vOffQ)))
    g.I('v_add_u32 %s, %d, %s' % (vr(vOffK2), 16384 - 1056, vr(vOffK)))
    g.I('v_add_u32 %s, %d, %s' % (vr(vOffQ2), 65536 - 1056, vr(vOffQ)))
    g.I('s_mov_b32 s19, 0x20000')
    g.I('s_mov_b32 s15, s19')
    qd = []
    for half in range(2):
        for bb in range(2):
            b = 2 * half + bb
            so = b * 4096 - bb * 2112
            if b:
                g.I('s_movk_i32 %s, %d' % (sr(sQoff + b), so))
            for a in range(2):
                imm = bb * 2112 + a * 1056
                qd.append('buffer_load_dwordx4 %s, s[12:15], %s offen%s%s lds' % (vr(vOffQ2 if a else vOffQ), sr(sQoff + b) if b else '0', (' offset:%d' % imm) if imm else '', OPT['qmod']))
    g.I('s_mul_i32 %s, %s, %d' % (sr(sQst), sr(sW), QW))
    g.I('s_add_u32 %s, %s, %d' % (sr(sQst), sr(sQst), 5 * SLOT))
    g.I('s_cmp_eq_u32 %s, 0' % sr(sW))
    g.I('s_cselect_b32 %s, %d, %s' % (sr(sQst), 3 * SLOT, sr(sQst)))
    g.I('s_mov_b32 m0, %s' % sr(sWR))
    g.I('s_waitcnt lgkmcnt(0)')
    if OPT['groups'] in ('58', 'PACK') and any(e[5] == 0 for e in build_table()):
        g.I('s_cmp_eq_u32 s37, 0')
        g.I('s_cbranch_scc1 %s' % ('L_empty' if OPT['probe'] else 'L_end'))
    stamp(g, 1, True)
    if OPT['probe'] == 11:
        g.I('s_memrealtime s[92:93]')
        g.mark('@RT1')
    if OPT['probe'] == 4:
        g.mark('@RT1')
        g.I('s_waitcnt lgkmcnt(0)')
    g.I('s_add_u32 s16, s6, s34')
    g.I('s_addc_u32 s17, s7, 0')
    g.I('s_mov_b32 s18, s35')
    g.I('s_add_u32 s12, s4, s32')
    g.I('s_addc_u32 s13, s5, 0')
    g.I('s_mov_b32 s14, s33')
    g.I('s_mov_b32 %s, s36' % sr(sOffA))

    def v_setup():
        g.I('s_add_u32 s20, s8, s34')
        g.I('s_addc_u32 s21, s9, 0')
        g.I('s_mov_b32 s22, s35')
        g.I('s_mov_b32 s23, s19')

    def v_lanes():
        g.I('v_lshl_add_u32 %s, %s, 4, %s' % (vr(vOffV), vr(vT2), vr(vOffV)))
        g.I('v_add_u32 %s, %d, %s' % (vr(vOffV2), 16384 - 1024, vr(vOffV)))

    def first_loads(thr):
        cnt = [0]

        def D(lst):
            for x in lst:
                g.I(x)
                if thr:
                    g.I('s_waitcnt vmcnt(%d)' % (thr[cnt[0]] - 1))
                cnt[0] += 1
        D(dma_k())
        g.I('s_mov_b32 m0, %s' % sr(sQst))
        g.I('s_nop 0')
        D(qd[0:4])
        g.I('s_add_u32 m0, %s, %d' % (sr(sQst), 4224))
        g.I('s_nop 0')
        D(qd[4:8])
        if not thr:
            v_lanes()
            v_setup()
        g.I(m0_v(0))
        g.I('s_nop 0')
        D(dma_v())

    def tile1(lbl):
        g.I('s_cmp_lt_u32 s37, 2')
        g.I('s_cbranch_scc1 %s' % lbl)
        g.ext(dma_tile(1))
        g.I('s_cmp_lt_u32 s37, 3')
        g.I('s_cbranch_scc1 %s' % lbl)
        g.ext([m0_k(2), NEXT_TILE] + dma_k())
        g.L(lbl)

    win = OPT['ramp'] or ([OPT['throttle']] * 12 if OPT['throttle'] else None)
    assert win and OPT['setup_first']
    g.I('s_bitcmp1_b32 s39, 1')
    g.I('s_cbranch_scc1 L_thr_setup')
    first_loads(None)
    tile1('L_no_t1')
    g.I('s_branch L_setup')
    g.L('L_thr_setup')
    v_lanes()
    g.L('L_setup')
    g.mark(' ---- LDS read addresses, row-sum selector, causal mask, zeroed accumulators ----')
    if OPT['icwarm']:
        g.I('s_bfe_u32 %s, s2, 0x50003' % sr(sTmp))
        g.I('s_lshl_b32 %s, %s, 2' % (sr(sTmp), sr(sTmp)))
        g.I('s_add_u32 %s, %s, %s' % (sr(sTmp), sr(sTmp), sr(sW)))
        g.I('s_lshl_b32 %s, %s, 6' % (sr(sTmp), sr(sTmp)))
        g.I('s_load_dwordx16 s[80:95], s[98:99], %s' % sr(sTmp))
        g.I('s_add_u32 %s, %s, 8192' % (sr(sTmp), sr(sTmp)))
        g.I('s_min_u32 %s, %s, %d' % (sr(sTmp), sr(sTmp), OPT['icwarm'] - 64))
        g.I('s_load_dwordx16 s[80:95], s[98:99], %s' % sr(sTmp))
    v_setup()
    g.I('s_mov_b32 s27, s19')
    g.I('s_mov_b32 %s, s37' % sr(sN))
    if OPT['prio']:
        g.I('s_bitcmp1_b32 s39, 0')
        g.I('s_cbranch_scc0 L_noprio')
        g.I('s_setprio %d' % OPT['prio'])
        g.L('L_noprio')
    stamp(g, 2, True)
    if OPT['probe'] == 3:
        g.mark('@RT1')
    g.I('s_add_u32 s24, s56, s32')
    g.I('s_addc_u32 s25, s57, 0')
    g.I('s_mov_b32 s26, s33')
    g.I('s_mov_b32 %s, 0x%08x' % (sr(sTdc), fbits(T_DEFER / C_SCALE)))
    g.I('v_mov_b32 %s, 0x%08x' % (vr(vC), fbits(C_SCALE)))
    g.I('v_and_b32 %s, 3, %s' % (vr(vT0), vr(vLane)))
    g.I('v_bfe_u32 %s, %s, 2, 2' % (vr(vT1), vr(vLane)))
    g.I('v_bfe_u32 %s, %s, 4, 1' % (vr(vT2), vr(vLane)))
    g.I('v_lshrrev_b32 %s, 5, %s' % (vr(vT3), vr(vLane)))
    g.I('v_mul_u32_u24 %s, 1056, %s' % (vr(vAK), vr(vT2)))
    g.I('v_lshl_add_u32 %s, %s, 8, %s' % (vr(vAK), vr(vT1), vr(vAK)))
    g.I('v_and_b32 %s, 1, %s' % (vr(vMX), vr(vT1)))
    g.I('v_xor_b32 %s, %s, %s' % (vr(vMX), vr(vMX), vr(vT3)))
    g.I('v_lshl_add_u32 %s, %s, 4, %s' % (vr(vAK), vr(vMX), vr(vAK)))
    g.I('v_mul_u32_u24 %s, %d, %s' % (vr(vMX), RW, vr(vT0)))
    g.I('v_add_u32 %s, %s, %s' % (vr(vAK), vr(vAK), vr(vMX)))
    g.I('v_add_u32 %s, %s, %s' % (vr(vAQ), sr(sQst), vr(vAK)))
    g.I('v_mul_u32_u24 %s, %d, %s' % (vr(vAV), RW, vr(vT1)))
    g.I('v_lshl_add_u32 %s, %s, 8, %s' % (vr(vAV), vr(vT3), vr(vAV)))
    g.I('v_lshl_add_u32 %s, %s, 5, %s' % (vr(vAV), vr(vT2), vr(vAV)))
    g.I('v_and_b32 %s, 1, %s' % (vr(vMX), vr(vT0)))
    g.I('v_lshrrev_b32 %s, 1, %s' % (vr(vMX2), vr(vT0)))
    g.I('v_lshl_add_u32 %s, %s, 4, %s' % (vr(vAV), vr(vMX), vr(vAV)))
    g.I('v_lshl_add_u32 %s, %s, 3, %s' % (vr(vAV), vr(vMX2), vr(vAV)))
    g.I('v_add_u32 %s, %d, %s' % (vr(vAV), VOFF, vr(vAV)))
    g.I('v_add_u32 %s, s38, %s' % (vr(vAVt), vr(vAV)))
    g.I('v_and_b32 %s, 31, %s' % (vr(vQQ), vr(vLane)))
    g.I('v_lshrrev_b32 %s, 4, %s' % (vr(vMX), vr(vLane)))
    g.I('v_and_b32 %s, 15, %s' % (vr(vMX2), vr(vLane)))
    if OPT['o64']:
        g.I('v_lshlrev_b32 %s, 12, %s' % (vr(vRowA), vr(vMX2)))
        g.I('v_and_b32 %s, 1, %s' % (vr(vRowB), vr(vMX)))
        g.I('v_lshl_add_u32 %s, %s, 5, %s' % (vr(vRowA), vr(vRowB), vr(vRowA)))
        g.I('v_lshrrev_b32 %s, 1, %s' % (vr(vRowB), vr(vMX)))
        g.I('v_lshl_add_u32 %s, %s, 4, %s' % (vr(vRowA), vr(vRowB), vr(vRowA)))
        g.I('s_lshl_b32 %s, %s, 8' % (sr(sTmp), sr(sW)))
        g.I('v_add_u32 %s, %s, %s' % (vr(vRowA), sr(sTmp), vr(vRowA)))
        g.I('v_add_u32 %s, 0x10000, %s' % (vr(vRowB), vr(vRowA)))
    elif not OPT['odir']:
        g.I('s_and_b32 %s, %s, 1' % (sr(sTmp), sr(sW)))
        g.I('s_mul_i32 %s, %s, %d' % (sr(sTmp), sr(sTmp), OW))
        g.I('s_mov_b32 %s, %d' % (sr(sTmp2), VOFF + 2 * SLOT))
        g.I('s_cmp_lt_u32 %s, 2' % sr(sW))
        g.I('s_cselect_b32 %s, %d, %s' % (sr(sTmp2), 2 * SLOT, sr(sTmp2)))
        g.I('s_add_u32 %s, %s, %s' % (sr(sTmp), sr(sTmp), sr(sTmp2)))
        g.I('v_mul_u32_u24 %s, %d, %s' % (vr(vAOW), OROW, vr(vQQ)))
        g.I('v_lshl_add_u32 %s, %s, 4, %s' % (vr(vAOW), vr(vT3), vr(vAOW)))
        g.I('v_add_u32 %s, %s, %s' % (vr(vAOW), sr(sTmp), vr(vAOW)))
        if OPT['epi2']:
            g.I('v_lshrrev_b32 %s, 3, %s' % (vr(vSt + 1), vr(vLane)))
            g.I('v_and_b32 %s, 7, %s' % (vr(vSt + 2), vr(vLane)))
            g.I('v_mul_u32_u24 %s, %d, %s' % (vr(vAOR), OROW, vr(vSt + 1)))
            g.I('v_lshl_add_u32 %s, %s, 4, %s' % (vr(vAOR), vr(vSt + 2), vr(vAOR)))
            g.I('v_add_u32 %s, %s, %s' % (vr(vAOR), sr(sTmp), vr(vAOR)))
            g.I('s_lshl_b32 %s, %s, 8' % (sr(sTmp), sr(sW)))
            g.I('v_lshlrev_b32 %s, 12, %s' % (vr(vSt), vr(vSt + 1)))
            g.I('v_lshl_add_u32 %s, %s, 4, %s' % (vr(vSt), vr(vSt + 2), vr(vSt)))
            g.I('v_add_u32 %s, %s, %s' % (vr(vSt), sr(sTmp), vr(vSt)))
            for i in range(1, 4):
                g.I('v_add_u32 %s, %d, %s' % (vr(vSt + i), 0x8000 * i, vr(vSt)))
        else:
            g.I('v_mul_u32_u24 %s, %d, %s' % (vr(vAOR), OROW, vr(vMX)))
            g.I('v_lshl_add_u32 %s, %s, 4, %s' % (vr(vAOR), vr(vMX2), vr(vAOR)))
            g.I('v_add_u32 %s, %s, %s' % (vr(vAOR), sr(sTmp), vr(vAOR)))
    if m16:
        g.I('v_and_b32 %s, 1, %s' % (vr(vMX), vr(vMX)))
        g.I('v_cmp_eq_u32 vcc, %s, %s' % (vr(vMX), vr(vMX2)))
        g.I('v_mov_b32 %s, 0x3f803f80' % vr(vNEG))
        for r in range(4):
            g.I('v_cndmask_b32 %s, 0, %s, vcc' % (vr(vSel + r), vr(vNEG)))
        for r in range(4):
            g.I('v_mov_b32 %s, 0' % vr(vLs + r))
    else:
        g.I('v_mov_b32 %s, 0' % vr(vL))
        g.I('v_mov_b32 %s, 0' % vr(vL2))
    g.I('v_lshlrev_b32 %s, 2, %s' % (vr(vMX), vr(vT3)))
    g.I('v_sub_u32 %s, %s, %s' % (vr(vQQ), vr(vQQ), vr(vMX)))
    g.I('v_mov_b32 %s, 0x%08x' % (vr(vNEG), fbits(-1e30)))
    for r0 in (0, 4, 8, 12):
        for r in range(r0, r0 + 4):
            key = (r & 3) + 8 * (r >> 2)
            g.I('v_cmp_gt_i32 %s, %d, %s' % (sr(sMask + 2 * (r - r0), 2), key, vr(vQQ)))
        for r in range(r0, r0 + 4):
            g.I('v_cndmask_b32 %s, 0, %s, %s' % (vr(vS + r), vr(vNEG), sr(sMask + 2 * (r - r0), 2)))
    if OPT['itstamp']:
        g.I('s_lshl_b32 %s, %s, 7' % (sr(sTmp), sr(sW)))
        g.I('s_add_u32 %s, %s, %d' % (sr(sTmp), sr(sTmp), LDS_BYTES))
        g.I('v_mov_b32 v248, %s' % sr(sTmp))
        g.I('v_mov_b32 v250, %s' % sr(sTmp))
    if OPT['zmfma']:
        for r in range(4):
            g.I('v_mov_b32 %s, 0' % vr(vP + r))
        for db in range(4):
            g.I('v_mfma_f32_32x32x16_bf16 %s, %s, %s, 0' % (vr(vO + 16 * db, 16), vr(vP, 4), vr(vP, 4)))
    else:
        for r in range(64):
            g.I('v_mov_b32 %s, 0' % vr(vO + r))
    g.I('s_sub_u32 %s, %s, 6' % (sr(sCnt), sr(sN)))
    for k in range(4):
        g.I('s_add_u32 %s, %s, %d' % (sr(sTmp), sr(sN), k))
        g.I('s_and_b32 %s, %s, 3' % (sr(sTmp), sr(sTmp)))
        g.I('s_mul_i32 %s, %s, %d' % (sr(sA + k), sr(sTmp), SLOT))
    g.I('s_add_u32 %s, %s, %d' % (sr(sWRV), sr(sWR), VOFF))
    if OPT['sched'] == 0:
        g.I('s_sub_u32 %s, s36, 0x10000' % sr(sOffV))
    else:
        g.I('s_sub_u32 %s, s36, 0x18000' % sr(sOffV))
    if win and OPT['setup_first']:
        g.I('s_bitcmp1_b32 s39, 1')
        g.I('s_cbranch_scc0 L_loaded')
        g.I('s_mov_b32 m0, %s' % sr(sWR))
        g.I('s_nop 0')
        first_loads(win)
        tile1('L_no_t1b')
        g.L('L_loaded')
    g.I('s_cmp_lt_u32 %s, 3' % sr(sN))
    g.I('s_cbranch_scc1 L_w12')
    g.I('s_waitcnt vmcnt(8)')
    g.I('s_branch L_w2d')
    g.L('L_w12')
    g.I('s_cmp_lt_u32 %s, 2' % sr(sN))
    g.I('s_cbranch_scc1 L_w2')
    g.I('s_waitcnt vmcnt(6)')
    g.I('s_branch L_w2d')
    g.L('L_w2')
    g.I('s_waitcnt vmcnt(2)')
    g.L('L_w2d')
    if not OPT['qdir']:
        for ks in range(8):
            g.I('ds_read_b128 %s, %s offset:%d' % (vr(vQ + 4 * ks, 4), vr(vAQ), 32 * ks))
        g.I('s_waitcnt lgkmcnt(0)')
    g.I('s_barrier')
    stamp(g, 3, True)
    if OPT['probe'] == 2:
        g.mark('@RT1')
    g.ext(k_reads(0))
    qk0 = qk_mfma(vr(vS, 16))
    g.I('s_cmp_lt_u32 %s, 4' % sr(sN))
    g.I('s_cbranch_scc1 L_short ; @carry')
    g.ext(flat(qk0[0], m0_v(2), qk0[1], dma_v()[0], qk0[2], qk0[3], dma_v()[1], m0_k(3), NEXT_TILE,
               qk0[4], qk0[5], dma_k()[0], qk0[6], qk0[7], dma_k()[1]))
    if OPT['qkstamp']: stamp(g, 1)
    g.I('s_waitcnt vmcnt(%d)' % (8 if OPT['v1late'] else 6))
    if OPT['qkstamp']: stamp(g, 2)
    g.I('s_barrier')
    g.I('s_cmp_lt_u32 %s, 5' % sr(sN))
    g.I('s_cbranch_scc1 L_no_k4')
    g.ext([m0_k(0), NEXT_TILE] + dma_k())
    g.L('L_no_k4')
    g.ext(k_reads(1))
    g.I('s_branch L_max0 ; @carry')
    g.L('L_short', carry=True)
    g.I('s_waitcnt lgkmcnt(0)')
    g.ext(qk0)
    g.I('s_cmp_lt_u32 %s, 3' % sr(sN))
    g.I('s_cbranch_scc1 L_n12')
    g.ext([m0_v(2), 's_nop 0'] + dma_v())
    g.I('s_waitcnt vmcnt(%d)' % (6 if OPT['v1late'] else 4))
    g.I('s_branch L_nd')
    g.L('L_n12')
    if OPT['dual']:
        g.I('s_bitcmp1_b32 %s, 2' % sr(sFlags))
        g.I('s_cbranch_scc1 L_n2f')
        g.I('s_waitcnt vmcnt(0)')
        g.I('s_branch L_nd')
        g.L('L_n2f')
        g.I('s_sub_u32 s12, s12, 0x20000')
        g.I('s_subb_u32 s13, s13, 0')
        g.I('s_mov_b32 m0, %s' % sr(sQst))
        g.I('s_nop 0')
        g.ext(qd[0:4])
        g.I('s_add_u32 m0, %s, %d' % (sr(sQst), 4224))
        g.I('s_nop 0')
        g.ext(qd[4:8])
        g.I('s_waitcnt vmcnt(%d)' % (10 if OPT['v1late'] else 8))
    else:
        g.I('s_waitcnt vmcnt(0)')
    g.L('L_nd')
    g.I('s_barrier')
    g.ext(k_reads(1))
    g.L('L_max0', carry=True)
    g.ext(max_tree())
    g.ext(cross_max())
    g.I('v_mov_b32 %s, %s' % (vr(vM), vr(vMX)))
    g.I('v_mul_f32 %s, %s, %s' % (vr(vMC), vr(vC), vr(vMX)))
    g.I('v_add_f32 %s, %s, %s' % (vr(vTHR), sr(sTdc), vr(vMX)))
    g.ext(x_fma())
    stamp(g, 4)
    if OPT['probe'] == 10:
        g.I('s_memrealtime s[92:93]')
    if OPT['probe'] == 11:
        g.I('s_memrealtime s[94:95]')
    g.I('s_cmp_lt_u32 %s, 4' % sr(sN))
    g.I('s_cbranch_scc1 L_d123 ; @carry')
    g.I('s_cmp_lt_u32 %s, 6' % sr(sN))
    g.I('s_cbranch_scc0 L_steady0 ; @carry')
    g.I('s_cmp_eq_u32 %s, 5' % sr(sN))
    g.I('s_cbranch_scc1 L_e4 ; @carry')
    g.I('s_branch L_e3 ; @carry')
    g.L('L_d123', carry=True)
    g.I('s_cmp_eq_u32 %s, 3' % sr(sN))
    g.I('s_cbranch_scc1 L_e2 ; @carry')
    g.I('s_cmp_eq_u32 %s, 2' % sr(sN))
    g.I('s_cbranch_scc1 L_e1 ; @carry')
    g.I('s_branch L_tail ; @carry')
    g.mark(' ---- steady loop (t + 5 < n), unrolled over the four ring phases ----')
    for i in range(OPT['shift']):
        g.I('s_nop 0')
    for p in range(4):
        g.L('L_steady%d' % p, carry=True)
        ex = ['s_sub_u32 %s, %s, 1' % (sr(sCnt), sr(sCnt))]
        if p < 3:
            ex.append('s_cbranch_scc1 L_e4 ; @carry')
        else:
            ex.append('s_cbranch_scc0 L_steady0 ; @carry')
        body(g, 's%d' % p, 8, ex, p=p, vdma=True, kdma=True)
    g.mark(' ---- last four full iterations (t = n-5 .. n-2): ring slots from registers, exact load counts ----')
    g.L('L_e4', carry=True)
    body(g, 'e4', 8, [], dyn=(3, 1, 2), vdma=True)
    g.L('L_e3', carry=True)
    body(g, 'e3', 6, [], dyn=(0, 2, 3), vdma=True)
    g.L('L_e2', carry=True)
    body(g, 'e2', 2, [], dyn=(1, 3, 0))
    g.L('L_e1', carry=True)
    body(g, 'e1', 0, [], dyn=(2, 0, 0))
    g.mark(' ---- last tile: softmax + PV, then normalise, transpose through LDS, store ----')
    g.L('L_tail', carry=True)
    g.I('s_waitcnt lgkmcnt(0)')
    if OPT['dual']:
        g.I('s_bitcmp1_b32 %s, 2' % sr(sFlags))
        g.I('s_cbranch_scc0 L_tail_go')
        for ks in range(8):
            g.I('ds_read_b128 %s, %s offset:%d' % (vr(vQ + 4 * ks, 4), vr(vAQ), 32 * ks))
        g.L('L_tail_go', carry=True)
    tr = v_reads(vAVt, 0)
    e = exps()
    c = cvts()
    pv0 = pv_mfma(0)
    pv1 = pv_mfma(1)
    g.ext(flat(tr[0:16], e[0:4], c[0], e[4], c[1], e[5], e[6], e[7], c[2], e[8], c[3]))
    g.ext(flat(pv0[0], e[9], e[10], c[4], pv0[1], e[11], e[12], c[5], pv0[2], e[13], e[14], pv0[3], e[15], c[6]))
    if m16:
        g.ext(flat(sum_mfma(0), c[7], 's_nop 0', sum_mfma(1)))
        g.ext(flat(pv1[0], pv1[1], pv1[2]))
        g.I('v_permlane16_swap_b32 %s, %s' % (vr(vLs), vr(vLs + 1)))
        g.I('v_mov_b32 %s, %s' % (vr(vT0), vr(vLs)))
        g.I(pv1[3])
        g.I('v_permlane32_swap_b32 %s, %s' % (vr(vLs), vr(vT0)))
        g.I('v_rcp_f32 %s, %s' % (vr(vT2), vr(vLs)))
    else:
        g.ext(flat(c[7], pv1[0]))
        g.I('v_add_f32 %s, %s, %s' % (vr(vL), vr(vL), vr(vL2)))
        g.I(pv1[1])
        g.I('v_mov_b32 %s, %s' % (vr(vT0), vr(vL)))
        g.I(pv1[2])
        g.I('v_permlane32_swap_b32 %s, %s' % (vr(vL), vr(vT0)))
        g.I(pv1[3])
        g.I('v_add_f32 %s, %s, %s' % (vr(vL), vr(vL), vr(vT0)))
        g.I('v_rcp_f32 %s, %s' % (vr(vT2), vr(vL)))
    stamp(g, 5)
    if OPT['probe'] == 10:
        g.I('s_memrealtime s[94:95]')
        g.mark('@RT1')
    if OPT['probe'] == 12:
        g.I('s_memrealtime s[92:93]')
    def epilogue_half():
        g.I('s_barrier')
        if OPT['epistamp']: stamp(g, 1)
        g.I('v_mov_b32 %s, %s' % (vr(vT3), vr(vT2)))

        def block(db):
            for rg in range(4):
                r = vO + 16 * db + 4 * rg
                g.I('v_pk_mul_f32 %s, %s, %s' % (vr(r, 2), vr(r, 2), vr(vT2, 2)))
                g.I('v_pk_mul_f32 %s, %s, %s' % (vr(r + 2, 2), vr(r + 2, 2), vr(vT2, 2)))
            wr = []
            for pr in range(2):
                r = vO + 16 * db + 8 * pr
                p = vK + 8 * db + 4 * pr
                for e2 in range(4):
                    g.I('v_cvt_pk_bf16_f32 %s, %s, %s' % (vr(p + e2), vr(r + 2 * e2), vr(r + 2 * e2 + 1)))
                wr.append('ds_write_b128 %s, %s offset:%d' % (vr(vAOW), vr(p, 4), 64 * db + 32 * pr))
            g.ext(wr)

        def reads(half):
            for i in range(4):
                g.I('ds_read_b128 %s, %s offset:%d' % (vr(vV + 16 * half + 4 * i, 4), vr(vAOR), 8 * OROW * i + 128 * half))

        def stores(half):
            def emit(mod):
                for i in range(4):
                    if not OPT['nostore']:
                        g.I('buffer_store_dwordx4 %s, %s, s[24:27], 0 offen%s%s' % (vr(vV + 16 * half + 4 * i, 4), vr(vSt + i), ' offset:128' if half else '', mod))
            if OPT['store2'] is None:
                emit(OPT['store_mod'])
            else:
                g.I('s_waitcnt lgkmcnt(%d)' % (0 if half else 2))
                g.I('s_bitcmp1_b32 %s, 1' % sr(sFlags))
                g.I('s_cbranch_scc1 L_st2_%d' % half)
                emit(OPT['store_mod'])
                g.I('s_branch L_std_%d' % half)
                g.L('L_st2_%d' % half)
                emit(OPT['store2'])
                g.L('L_std_%d' % half)
        block(0)
        block(1)
        reads(0)
        block(2)
        stores(0)
        block(3)
        if OPT['epistamp']: stamp(g, 2)
        reads(1)
        if OPT['epistamp']:
            g.I('s_waitcnt lgkmcnt(0)')
            stamp(g, 3)
        stores(1)

    def epilogue_lds():
        if not OPT['odir']:
            g.I('s_barrier')
            if OPT['epistamp']: stamp(g, 1)
            for i in range(1, 8):
                g.I('v_add_u32 %s, %d, %s' % (vr(vX + i), 0x4000 * i, vr(vOffO)))
        g.I('v_mov_b32 %s, %s' % (vr(vT3), vr(vT2)))
        for db in range(4):
            wr = []
            for rg in range(4):
                r = vO + 16 * db + 4 * rg
                g.I('v_pk_mul_f32 %s, %s, %s' % (vr(r, 2), vr(r, 2), vr(vT2, 2)))
                g.I('v_pk_mul_f32 %s, %s, %s' % (vr(r + 2, 2), vr(r + 2, 2), vr(vT2, 2)))
            for pr in range(2):
                r = vO + 16 * db + 8 * pr
                p = vK + 8 * db + 4 * pr
                for e2 in range(4):
                    g.I('v_cvt_pk_bf16_f32 %s, %s, %s' % (vr(p + e2), vr(r + 2 * e2), vr(r + 2 * e2 + 1)))
                off = 64 * db + 32 * pr
                if OPT['odir']:
                    wr.append('buffer_store_dwordx4 %s, %s, s[24:27], 0 offen%s%s' % (vr(p, 4), vr(vRow), (' offset:%d' % off) if off else '', OPT['store_mod']))
                else:
                    wr.append('ds_write_b128 %s, %s offset:%d' % (vr(vAOW), vr(p, 4), off))
            g.ext(wr)
        if not OPT['odir']:
            if OPT['epistamp']: stamp(g, 2)
            g.I('s_waitcnt lgkmcnt(0)')
            for i in range(8):
                g.I('ds_read_b128 %s, %s offset:%d' % (vr(vV + 4 * i, 4), vr(vAOR), 4 * OROW * i))
            if OPT['epistamp']:
                g.I('s_waitcnt lgkmcnt(0)')
                stamp(g, 3)
            for i in range(8):
                if not OPT['nostore']:
                    g.I('buffer_store_dwordx4 %s, %s, s[24:27], 0 offen%s' % (vr(vV + 4 * i, 4), vr(vX + i) if i else vr(vOffO), OPT['store_mod']))

    if OPT['o64']:
        if OPT['dual']:
            pass
        g.I('v_mov_b32 %s, %s' % (vr(vT3), vr(vT2)))
        for db in range(4):
            for rg in range(4):
                r = vO + 16 * db + 4 * rg
                g.I('v_pk_mul_f32 %s, %s, %s' % (vr(r, 2), vr(r, 2), vr(vT2, 2)))
                g.I('v_pk_mul_f32 %s, %s, %s' % (vr(r + 2, 2), vr(r + 2, 2), vr(vT2, 2)))
            for pr in range(2):
                r = vO + 16 * db + 8 * pr
                p = vK + 8 * db + 4 * pr
                for e2 in range(4):
                    g.I('v_cvt_pk_bf16_f32 %s, %s, %s' % (vr(p + e2), vr(r + 2 * e2), vr(r + 2 * e2 + 1)))
            x = vK + 8 * db
            for e2 in range(4):
                g.I('v_permlane16_swap_b32 %s, %s' % (vr(x + e2), vr(x + 4 + e2)))
            off = (' offset:%d' % (64 * db)) if db else ''
            if not OPT['nostore']:
                g.I('buffer_store_dwordx4 %s, %s, s[24:27], 0 offen%s%s' % (vr(x, 4), vr(vRowA), off, OPT['store_mod']))
                g.I('buffer_store_dwordx4 %s, %s, s[24:27], 0 offen%s%s' % (vr(x + 4, 4), vr(vRowB), off, OPT['store_mod']))
    elif OPT['epi2']:
        epilogue_half()
    else:
        epilogue_lds()
    if OPT['dual']:
        g.I('s_bitcmp1_b32 %s, 2' % sr(sFlags))
        g.I('s_cbranch_scc1 L_follow')
    stamp(g, 6)
    if OPT['stamp']:
        g.I('s_waitcnt vmcnt(0)')
        stamp(g, 7)
        g.I('s_getreg_b32 s98, hwreg(HW_REG_HW_ID)')
        g.I('s_waitcnt lgkmcnt(0)')
        g.I('s_lshl_b32 %s, s2, 2' % sr(sTmp))
        g.I('s_add_u32 %s, %s, %s' % (sr(sTmp), sr(sTmp), sr(sW)))
        g.I('s_lshl_b32 %s, %s, 6' % (sr(sTmp), sr(sTmp)))
        g.I('s_mov_b32 s12, s96')
        g.I('s_mov_b32 s13, s97')
        g.I('s_mov_b32 s14, 0x100000')
        for k in range(8):
            g.I('v_mov_b32 %s, s%d' % (vr(vK + k), 72 + 2 * k))
        g.I('v_mov_b32 %s, s98' % vr(vK + 8))
        g.I('v_mov_b32 %s, %s' % (vr(vK + 9), sr(sN)))
        g.I('s_memrealtime s[88:89]')
        g.I('s_waitcnt lgkmcnt(0)')
        g.I('v_mov_b32 %s, s88' % vr(vK + 10))
        g.I('v_mov_b32 %s, s90' % vr(vK + 11))
        g.I('v_mov_b32 %s, %s' % (vr(vT0), sr(sTmp)))
        if OPT['itstamp']:
            g.I('v_lshl_add_u32 v250, %s, 2, v250' % vr(vLane))
            g.I('ds_read_b32 v251, v250')
            g.I('s_lshl_b32 %s, s2, 2' % sr(sTmp2))
            g.I('s_add_u32 %s, %s, %s' % (sr(sTmp2), sr(sTmp2), sr(sW)))
            g.I('s_lshl_b32 %s, %s, 6' % (sr(sTmp2), sr(sTmp2)))
            g.I('s_add_u32 %s, %s, 0x40000' % (sr(sTmp2), sr(sTmp2)))
            g.I('v_lshlrev_b32 v252, 2, %s' % vr(vLane))
            g.I('v_add_u32 v252, %s, v252' % sr(sTmp2))
            g.I('s_waitcnt lgkmcnt(0)')
            g.I('s_mov_b64 exec, 0xffff')
            g.I('buffer_store_dword v251, v252, s[12:15], 0 offen')
        g.I('s_mov_b64 exec, 1')
        g.I('buffer_store_dwordx4 %s, %s, s[12:15], 0 offen' % (vr(vK, 4), vr(vT0)))
        g.I('buffer_store_dwordx4 %s, %s, s[12:15], 0 offen offset:16' % (vr(vK + 4, 4), vr(vT0)))
        g.I('buffer_store_dwordx4 %s, %s, s[12:15], 0 offen offset:32' % (vr(vK + 8, 4), vr(vT0)))
    if OPT['dbg']:
        g.I('s_load_dwordx2 s[12:13], s[0:1], 40')
        g.I('s_memrealtime s[84:85]')
        g.I('s_waitcnt vmcnt(0) lgkmcnt(0)')
        g.I('s_memrealtime s[86:87]')
        g.I('s_mov_b32 s14, 256')
        g.I('s_waitcnt lgkmcnt(0)')
        g.I('s_lshr_b32 %s, s2, 8' % sr(sTmp))
        g.I('s_lshl_b32 %s, %s, 2' % (sr(sTmp), sr(sTmp)))
        g.I('s_mov_b64 exec, 1')
        def amax(sval, off, cls, neg=False):
            if neg:
                g.I('s_not_b32 %s, %s' % (sr(sTmp2), sval))
                g.I('v_mov_b32 v2, %s' % sr(sTmp2))
            else:
                g.I('v_mov_b32 v2, %s' % sval)
            if cls:
                g.I('v_mov_b32 v3, %s' % sr(sTmp))
            else:
                g.I('v_mov_b32 v3, 0')
            g.I('buffer_atomic_umax v2, v3, s[12:15], 0 offen offset:%d' % off)
        amax('s72', 0, False, True)
        amax('s86', 4, True)
        amax('s78', 16, True)
        amax('s86', 28, True, True)
        amax('s72', 40, True)
        amax('s82', 52, True)
        g.I('s_waitcnt vmcnt(0)')
    if OPT['probe']:
        g.mark('@RTSTORE')
    g.I('s_endpgm')
    if OPT['dual']:
        g.L('L_follow')
        g.I('s_bitset0_b32 %s, 2' % sr(sFlags))
        g.I('s_sub_u32 s24, s24, 0x20000')
        g.I('s_subb_u32 s25, s25, 0')
        g.ext(k_reads(1))
        for r0 in (0, 4, 8, 12):
            for r in range(r0, r0 + 4):
                key = (r & 3) + 8 * (r >> 2)
                g.I('v_cmp_gt_i32 %s, %d, %s' % (sr(sMask + 2 * (r - r0), 2), key, vr(vQQ)))
            for r in range(r0, r0 + 4):
                g.I('v_cndmask_b32 %s, 0, %s, %s' % (vr(vS + r), vr(vNEG), sr(sMask + 2 * (r - r0), 2)))
        q0 = qk_mfma(vr(vS, 16))
        zero = ['v_mov_b32 %s, 0' % vr(vLs + r) for r in range(4 if m16 else 0)]
        if not m16:
            zero += ['v_mov_b32 %s, 0' % vr(vL), 'v_mov_b32 %s, 0' % vr(vL2)]
        zero += ['v_mov_b32 %s, 0' % vr(vP + r) for r in range(4)]
        g.ext(zero)
        g.I('s_waitcnt lgkmcnt(0)')
        g.ext(q0)
        for db in range(4):
            g.I('v_mfma_f32_32x32x16_bf16 %s, %s, %s, 0' % (vr(vO + 16 * db, 16), vr(vP, 4), vr(vP, 4)))
        g.ext(max_tree())
        g.ext(cross_max())
        g.I('v_mov_b32 %s, %s' % (vr(vM), vr(vMX)))
        g.I('v_mul_f32 %s, %s, %s' % (vr(vMC), vr(vC), vr(vMX)))
        g.ext(x_fma())
        g.I('s_branch L_tail')
    for tag in ('s0', 's1', 's2', 's3', 'e4', 'e3', 'e2', 'e1'):
        rare(g, tag)
    if OPT['probe'] and OPT['groups'] in ('58', 'PACK') and any(e[5] == 0 for e in build_table()):
        g.L('L_empty')
        g.mark('@RTSTORE')
    g.L('L_end')
    g.I('s_endpgm')
    return g.l


def apply_drop(lines):
    if not OPT['drop']:
        return lines
    pats = OPT['drop'].split(',')
    out = []
    inloop = False
    for ln in lines:
        if ln.startswith('L_steady0'):
            inloop = True
        if ln.startswith('L_tail'):
            inloop = False
        if inloop and any(p in ln for p in pats):
            continue
        out.append(ln)
    return out


def main():
    out = sys.argv[1]
    body_l = apply_drop(gen())
    body_l = auto_lgkm(body_l)
    body_l, nn = fix_hazards(body_l)
    idx = {ln.split(':')[0].strip(): k for k, ln in enumerate(body_l) if ln.split(';')[0].strip().endswith(':')}
    if OPT['align']:
        from align8 import align
        if OPT['align'] >= 2:
            body_l, ch0, nn0 = align(body_l, 'L_pc', 'L_w2d', minrun=(6 if OPT['align'] == 2 else 99))
            print('prologue: widened', ch0, 'nops', nn0)
        body_l, ch, nn2 = align(body_l, 'L_w2d', 'L_rare_s0')
        print('widened', ch, 'alignment nops', nn2)
    bad = check_cfg(body_l)
    assert bad == 0
    for nm, lo, hi in (('steady', 'L_steady0', 'L_steady1'), ('e4', 'L_e4', 'L_e3'), ('e1', 'L_e1', 'L_tail')):
        ins = [parse(x) for x in body_l[idx[lo]:idx[hi]]]
        ins = [x for x in ins if x]
        print(nm, 'body:', len(ins), 'instructions,', sum(1 for x in ins if x.op == 's_nop'), 'nops,', sum(1 for x in ins if x.op == 's_waitcnt'), 'waits')
    tbl = build_table()
    hdr = open('cdna_kernels/%s.s.ref' % NAME).read().split('\n')
    comments = [h for h in hdr if h.startswith(';') and '@launch' not in h]
    o = []
    o += comments
    if OPT['bench'] == 1:
        o.append('; @launch grid=(256,1,1) block=(256,1,1) lds=%d' % 100000)
    elif OPT['bench'] == 2:
        o.append('; @launch grid=(512,1,1) block=(256,1,1) lds=%d' % (LDS_BYTES + 1024))
    else:
        o.append('; @launch grid=(%d,1,1) block=(256,1,1) lds=%d' % (OPT['grid'] or NWG(), LDS_BYTES + (1024 if OPT['itstamp'] else 0)))
    o += [
        ';',
        '; Varlen causal GQA flash attention, hand-scheduled for gfx950 (emitted by my own generator script).',
        ';  * workgroup = 4 waves = one 32-token q-block of one (sequence, kv head); wave w = q head 4*kvh+w.',
        ';    The sequence boundaries are constants of the problem: the static schedule (L_table, one 32-byte entry',
        ';    per workgroup) holds byte offsets, sizes, tile count n and flags.  Entries 8k+x: x = XCD under round-robin',
        ';    dispatch (all q-blocks of a (sequence, kv head) share one L2), k and k+32 share a CU (long + short item).',
        ';    Placement only affects speed.  Flagged 2-tile items also do q-block 0, whose tile is still in LDS.',
        ';  * S^T = K Q^T with 32x32x16 MFMA (lane = query row), online softmax against a running row max that is',
        ';    refreshed whenever a tile exceeds it by more than 2^8 (run-time check, rescale path L_rare_*),',
        ';    O^T += V^T P^T (V through ds_read_b64_tr_b16), row sums through one 16x16x32 MFMA per 16 keys.',
        ';  * K/V tiles (32 keys) stream by LDS-DMA into two 4-slot rings, diagonal tile first (mask = C operand);',
        ';    iteration t overlaps QK(t+1), softmax(t) and PV(t); one barrier per tile; loads run 3 tiles ahead.',
        ';  * Q and O go through LDS so that all global accesses are full rows; output stores are non-temporal.',
        ';',
    ]
    o.append('.amdgcn_target "amdgcn-amd-amdhsa--gfx950"')
    o.append('.text')
    o.append('.globl %s_kernel' % NAME)
    o.append('.p2align 8')
    o.append('.type %s_kernel,@function' % NAME)
    o.append('%s_kernel:' % NAME)
    o += body_l
    if not OPT['imm']:
        o.append('.p2align 6')
        o.append('.type L_table,@object')
        o.append('L_table:')
        for e in tbl:
            o.append('    .long ' + ', '.join('0x%x' % x for x in e))
        o.append('.size L_table, %d' % (32 * len(tbl)))
    o.append('.section .rodata,"a"')
    o.append('.p2align 6')
    o.append('.amdhsa_kernel %s_kernel' % NAME)
    o.append('  .amdhsa_next_free_vgpr %d' % 256)
    o.append('  .amdhsa_next_free_sgpr 102')
    o.append('  .amdhsa_accum_offset 256')
    o.append('  .amdhsa_group_segment_fixed_size 0')
    o.append('  .amdhsa_kernarg_size 56')
    o.append('  .amdhsa_user_sgpr_count 2')
    o.append('  .amdhsa_user_sgpr_kernarg_segment_ptr 1')
    o.append('  .amdhsa_system_sgpr_workgroup_id_x 1')
    o.append('  .amdhsa_float_denorm_mode_32 3')
    o.append('.end_amdhsa_kernel')
    open(out, 'w').write('\n'.join(o) + '\n')
    n_ins = sum(1 for ln in body_l if ln.startswith('    ') and not ln.strip().startswith(';'))
    print('wrote %s: %d instructions, %d nops inserted' % (out, n_ins, nn))


main()
```
